```python
import torch

def _softmax(x, axis=-1):
    return torch.softmax(x, dim=axis)
def _gelu(x):
    return torch.nn.functional.gelu(x, approximate="tanh")
def _silu(x):
    return torch.nn.functional.silu(x)
def _sigmoid(x):
    return torch.sigmoid(x)
def _layernorm(x, axis=-1, eps=1e-5):
    m = x.mean(dim=axis, keepdim=True)
    v = x.var(dim=axis, keepdim=True, unbiased=False)
    return (x - m) / torch.sqrt(v + eps)
def _scatter_add(tgt, idx, src, axis=0):
    return tgt.clone().index_add_(axis, idx, src)
def _segment_sum(src, seg, n):
    out = torch.zeros((n,) + src.shape[1:], dtype=src.dtype)
    return out.index_add_(0, seg, src)
def _pad(x, pw):
    flat = tuple(v for pair in reversed(pw) for v in pair)
    return torch.nn.functional.pad(x, flat)

kernel_name = 'gated_mix__sliding_block__mixer_s_mlp__prompt'

def setup_inputs():

    _w = (lambda a: (lambda t: t.to(torch.bfloat16) if t.is_floating_point() else t)(torch.as_tensor(a)))
    def _A_setup():
        B, S, D = 1, 2048, 512
        return {
            "x": _w((lambda *s: torch.randn(*s, dtype=torch.bfloat16) * 0.05)(B, S, D)),
            "wqkv": _w((lambda *s: torch.randn(*s, dtype=torch.bfloat16) * 1.6)(D, 3 * D)),
            "wo": _w((lambda *s: torch.randn(*s, dtype=torch.bfloat16) * 0.4)(D, D)),
        }
    _A_in = _A_setup()

    def _B_setup():
        B, S, D, F = 1, 2048, 512, 1792
        return {
            "x":  _w((lambda *s: torch.randn(*s, dtype=torch.bfloat16) * 0.05)(B, S, D)),
            "w1": _w((lambda *s: torch.randn(*s, dtype=torch.bfloat16) * 3.2)(D, D) * (D ** -0.5)),
            "w2": _w((lambda *s: torch.randn(*s, dtype=torch.bfloat16) * 3.2)(D, D) * (D ** -0.5)),
            "w3": _w((lambda *s: torch.randn(*s, dtype=torch.bfloat16) * 3.2)(D, F) * (D ** -0.5)),
            "w4": _w((lambda *s: torch.randn(*s, dtype=torch.bfloat16) * 3.2)(F, D) * (F ** -0.5)),
        }
    _B_in = _B_setup()

    return {
        "A_x": _A_in["x"],
        "A_wqkv": _A_in["wqkv"],
        "A_wo": _A_in["wo"],
        "B_x": _B_in["x"],
        "B_w1": _B_in["w1"],
        "B_w2": _B_in["w2"],
        "B_w3": _B_in["w3"],
        "B_w4": _B_in["w4"],
        "gate_w": _w((lambda *s: torch.randn(*s, dtype=torch.bfloat16) * 0.05)(512) * 16.0),
    }

def reference(A_x, A_wqkv, A_wo, B_x, B_w1, B_w2, B_w3, B_w4, gate_w):
    def _A_ref(x, wqkv, wo):
        B, S, D = x.shape
        H = 32; Dh = D // H; W = 256
        qkv = (lambda x, *d: x.permute(*d))((x @ wqkv).reshape(B, S, 3, H, Dh), 2, 0, 3, 1, 4)
        q, k, v = qkv[0], qkv[1], qkv[2]
        scores = torch.einsum("bhqd,bhkd->bhqk", q, k) * (Dh ** -0.5)
        idx = torch.arange(S)
        mask = (idx[:, None] - idx[None, :] >= 0) & (idx[:, None] - idx[None, :] < W)
        scores = torch.where(mask[None, None], scores, -1e9)
        p = _softmax(scores, axis=-1)
        o = torch.einsum("bhqk,bhkd->bhqd", p, v)
        return (lambda x, *d: x.permute(*d))(o, 0, 2, 1, 3).reshape(B, S, D) @ wo

    def _B_ref(x, w1, w2, w3, w4):
        B, S, D = x.shape
        h = _gelu(_layernorm(x, axis=-1) @ w1)
        c = D // 4
        g0 = _pad(h[:, :, 0*c:1*c], ((0, 0), (1, 0), (0, 0)))[:, :S, :]
        g1 = _pad(h[:, :, 1*c:2*c], ((0, 0), (0, 1), (0, 0)))[:, 1:, :]
        g2 = _pad(h[:, :, 2*c:3*c], ((0, 0), (2, 0), (0, 0)))[:, :S, :]
        g3 = _pad(h[:, :, 3*c:   ], ((0, 0), (0, 2), (0, 0)))[:, 2:, :]
        hs = torch.concatenate([g0, g1, g2, g3], axis=-1) @ w2
        x1 = x + hs
        h2 = _gelu(_layernorm(x1, axis=-1) @ w3) @ w4
        return x1 + h2

    x = A_x
    g = _sigmoid((x * gate_w).sum(-1, keepdims=True))
    a = _A_ref(x, A_wqkv, A_wo)
    b = _B_ref(x, B_w1, B_w2, B_w3, B_w4)
    return g * a + (1 - g) * b
```

```python
import re

TRANS = ('v_exp_f32', 'v_log_f32', 'v_rcp_f32', 'v_rsq_f32', 'v_sqrt_f32', 'v_sin_f32', 'v_cos_f32')

def regs_of(tok):
    tok = tok.strip()
    tok = tok.lstrip('-')
    m = re.fullmatch(r'abs\((.*)\)', tok) or re.fullmatch(r'\|(.*)\|', tok)
    if m: tok = m.group(1)
    m = re.fullmatch(r'([vsa])(\d+)', tok)
    if m: return {(m.group(1), int(m.group(2)))}
    m = re.fullmatch(r'([vsa])\[(\d+):(\d+)\]', tok)
    if m: return {(m.group(1), i) for i in range(int(m.group(2)), int(m.group(3)) + 1)}
    if tok == 'vcc': return {('s', 'vcc')}
    if tok == 'exec': return {('s', 'exec')}
    if tok == 'm0': return {('s', 'm0')}
    return set()

def split_ops(rest):
    out, depth, cur = [], 0, ''
    for ch in rest:
        if ch in '[(': depth += 1
        if ch in '])': depth -= 1
        if ch == ',' and depth == 0:
            out.append(cur); cur = ''
        else:
            cur += ch
    out.append(cur)
    res = []
    for o in out:
        o = o.strip()
        res.append(o.split()[0] if o else '')
    return res

class Ins:
    def __init__(self, text):
        self.text = text
        parts = text.split(None, 1)
        self.op = op = parts[0]
        rest = parts[1] if len(parts) > 1 else ''
        ops = split_ops(rest) if rest else []
        R = [regs_of(o) for o in ops]
        self.kind = 'other'
        self.w, self.r = set(), set()
        self.srcc = set(); self.ab = set(); self.passes = 0
        self.lds_dma = False; self.store_data = set(); self.dpp = False
        U = lambda l: set().union(*l) if l else set()
        if op.startswith('v_mfma'):
            self.kind = 'mfma'
            self.w = R[0]; self.ab = R[1] | R[2]; self.srcc = R[3]; self.r = self.ab | self.srcc
            self.passes = 8 if '32x32x16' in op else 4 if '16x16x32' in op else 2 if '4x4x4' in op else None
            assert self.passes
        elif op.startswith('v_'):
            self.kind = 'valu'
            self.dpp = '_dpp' in op
            if op.startswith('v_cmp'):
                self.w = R[0]; self.r = U(R[1:])
            elif op.startswith('v_permlane'):
                self.w = R[0] | R[1]; self.r = R[0] | R[1]
            elif op.startswith(('v_fmac', 'v_dot2c', 'v_writelane')) or self.dpp:
                self.w = R[0]; self.r = U(R)
            elif op.startswith(('v_add_co', 'v_addc_co')):
                self.w = R[0] | R[1]; self.r = U(R[2:])
            else:
                self.w = R[0]; self.r = U(R[1:])
        elif op.startswith('ds_'):
            self.kind = 'ds'
            if op.startswith('ds_read') or 'permute' in op:
                self.w = R[0]; self.r = U(R[1:])
            else:
                self.r = U(R)
        elif op.startswith(('buffer_', 'global_')):
            self.kind = 'vmem'
            if re.search(r'\blds\b', rest) or '_lds_' in op:
                self.lds_dma = True; self.r = U(R) | {('s', 'm0')}
            elif 'load' in op:
                self.w = R[0]; self.r = U(R[1:])
            else:
                self.r = U(R)
                if op.endswith(('x4', 'x3')):
                    self.store_data = R[0] if op.startswith('buffer') else R[1]
        elif op.startswith(('s_load', 's_memtime', 's_memrealtime')):
            self.kind = 'smem'; self.w = R[0]; self.r = U(R[1:])
        elif op.startswith('s_atomic'):
            self.kind = 'smem'; self.r = U(R)
            if 'glc' in rest: self.w = R[0]
        elif op.startswith('s_'):
            self.kind = 'salu'
            if op.startswith(('s_cmp', 's_bitcmp', 's_cbranch', 's_branch', 's_barrier', 's_nop', 's_waitcnt', 's_endpgm', 's_setprio', 's_sleep')):
                self.r = U(R)
            elif op.startswith(('s_addk', 's_mulk')):
                self.w = R[0]; self.r = R[0]
            elif 'saveexec' in op:
                self.w = R[0] | {('s', 'exec')}; self.r = U(R[1:]) | {('s', 'exec')}
            else:
                self.w = R[0]; self.r = U(R[1:])
        else:
            raise ValueError('unknown op ' + text)
        self.trans = op.replace('_e32', '').replace('_e64', '') in TRANS
        self.states = 1
        if op == 's_nop': self.states = int(rest) + 1

MF_D = {2: 5, 4: 8, 8: 12}
MF_OVL = {2: 4, 4: 6, 8: 10}
MF_WAR = {2: 1, 4: 3, 8: 7}

def need(prev, cur):
    n = 0
    vw = {x for x in prev.w if x[0] in 'va'}
    sw = {x for x in prev.w if x[0] == 's'}
    if prev.kind == 'valu':
        if cur.kind == 'mfma' and vw & cur.r: n = max(n, 2)
        if cur.kind == 'valu':
            if prev.trans and not cur.trans and vw & cur.r: n = max(n, 1)
            if prev.trans and cur.trans and vw & cur.r: n = max(n, 1)
            if cur.op.startswith('v_permlane') and vw & cur.r: n = max(n, 2)
            if cur.dpp and vw & cur.r: n = max(n, 2)
            if cur.op.startswith(('v_readlane', 'v_readfirstlane')) and vw & cur.r: n = max(n, 1)
            if sw & cur.r: n = max(n, 4 if cur.op.startswith(('v_readlane', 'v_writelane')) else 2)
            if prev.op.startswith('v_dot') and vw & (cur.r | cur.w) and not (cur.op == prev.op and not (vw & (cur.r - cur.w))): n = max(n, 3)
        if prev.trans and cur.kind in ('vmem', 'ds') and vw & cur.r: n = max(n, 1)
        if prev.op.startswith('v_dot') and cur.kind != 'valu' and vw & (cur.r | cur.w): n = max(n, 3)
        if cur.kind == 'vmem' and sw & cur.r: n = max(n, 5)
        if cur.kind in ('salu', 'smem') and sw & cur.r: n = max(n, 2)
    if prev.kind == 'mfma':
        p = prev.passes
        if cur.kind == 'mfma':
            if vw & cur.ab: n = max(n, MF_D[p])
            if vw & cur.srcc:
                if cur.srcc == vw and cur.passes == p: n = max(n, 2 if p == 2 else 0)
                else: n = max(n, MF_OVL[p])
            elif vw & cur.w: n = max(n, MF_OVL[p])
        elif cur.kind in ('valu', 'vmem', 'ds'):
            if vw & (cur.r | cur.w): n = max(n, MF_D[p])
            if prev.srcc & cur.w: n = max(n, MF_WAR[p])
    if prev.store_data and prev.store_data & cur.w: n = max(n, 2)
    if prev.kind == 'salu' and ('s', 'm0') in prev.w and cur.lds_dma: n = max(n, 1)
    if prev.kind == 'salu' and ('s', 'exec') in prev.w and cur.dpp: n = max(n, 2)
    return n

class Wave:
    def __init__(self, name):
        self.name = name
        self.lines = []
        self.hist = []
        self.vm = []
        self.lg = []
        self.sm = []
        self.bars = []
        self.nops = 0
        self.count = 0
    def raw(self, s):
        self.lines.append(s)
    def comment(self, s):
        self.lines.append('    ; ' + s)
    def label(self, name):
        self.lines.append(name + ':')
    def _push(self, ins):
        self.lines.append('    ' + ins.text)
        self.hist.append(ins)
        if len(self.hist) > 24: self.hist.pop(0)
        self.count += 1
    def waitcnt(self, vm=None, lg=None):
        parts = []
        if vm is not None and len(self.vm) > vm:
            assert vm <= 63
            parts.append('vmcnt(%d)' % vm); self.vm = self.vm[len(self.vm) - vm:] if vm else []
        if lg is not None and (len(self.lg) > lg or (lg == 0 and self.sm)):
            lgv = min(lg, 15)
            parts.append('lgkmcnt(%d)' % lgv); self.lg = self.lg[len(self.lg) - lgv:] if lgv else []
            if lgv == 0: self.sm = []
        if parts: self._push(Ins('s_waitcnt ' + ' '.join(parts)))
    def wait_vm_tag(self, tag):
        idx = [i for i, (t, _) in enumerate(self.vm) if t == tag]
        if idx: self.waitcnt(vm=len(self.vm) - 1 - idx[-1])
    def wait_lg_tag(self, tag):
        idx = [i for i, (t, _) in enumerate(self.lg) if t == tag]
        if idx: self.waitcnt(lg=len(self.lg) - 1 - idx[-1])
    def e(self, text, tag=None):
        ins = Ins(text)
        touched = ins.r | ins.w
        vmw = lgw = None
        for i, (_, d) in enumerate(self.vm):
            if d & touched: vmw = len(self.vm) - 1 - i
        for i, (_, d) in enumerate(self.lg):
            if d & touched: lgw = len(self.lg) - 1 - i
        if any(d & touched for d in self.sm): lgw = 0
        if ins.kind == 'vmem' and len(self.vm) >= 62: vmw = min(61, vmw if vmw is not None else 99)
        if ins.kind == 'ds' and len(self.lg) >= 13: lgw = min(12, lgw if lgw is not None else 99)
        if vmw is not None or lgw is not None: self.waitcnt(vm=vmw, lg=lgw)
        dist, pad = 0, 0
        for prev in reversed(self.hist):
            pad = max(pad, need(prev, ins) - dist)
            dist += prev.states
            if dist >= 14: break
        if pad > 0:
            self.nops += pad
            self._push(Ins('s_nop %d' % (pad - 1)))
        self._push(ins)
        if ins.kind == 'vmem': self.vm.append((tag, set(ins.w)))
        elif ins.kind == 'ds': self.lg.append((tag, set(ins.w)))
        elif ins.kind == 'smem': self.sm.append(set(ins.w))
    def bar(self, name):
        self.bars.append(name)
        self._push(Ins('s_barrier'))
        self.lines[-1] += '    ; ' + name
    def text(self):
        return '\n'.join(self.lines)

def v(a, n=1): return 'v%d' % a if n == 1 else 'v[%d:%d]' % (a, a + n - 1)
def s(a, n=1): return 's%d' % a if n == 1 else 's[%d:%d]' % (a, a + n - 1)
```

```python
KB = 1024
MB = 1024 * 1024
WS_CNT = 0
WS_G = 8 * KB
WS_CSP = 16 * KB
WS_DIAG = 128 * KB
WS_STATS = 256 * KB
WS_HS = 1 * MB
WS_X1 = 3 * MB
WS_O = 5 * MB
WS_Q = 7 * MB
WS_K = 9 * MB
WS_V = 11 * MB
WS_H3 = 13 * MB
WS_END = 20 * MB
```

```python
import sys, copy, struct
from asmlib import *
from layout import *

DIAG = '--diag' in sys.argv
NAME = 'gated_mix__sliding_block__mixer_s_mlp__prompt_kernel'
def fl(x): return '0x%08x' % struct.unpack('<I', struct.pack('<f', x))[0]
LOG2E = 1.4426950408889634
C0 = -2.0 * LOG2E * 0.7978845608028654
C1 = C0 * 0.044715
SL = lambda i: i * 16384
SPIN = 400000

P_X, P_WQKV, P_WO, P_W1, P_W2, P_W3, P_W4, P_GW, P_OUT, P_DBG, P_WS = 8, 10, 12, 16, 18, 20, 22, 24, 26, 28, 30
sW, sX, sIDX, sCS, sR64, sRB128, sJ, sV4 = 3, 32, 33, 34, 35, 36, 37, 38
R_WS = 72

def srd(w, r, ptr, nbytes):
    w.e(f's_mov_b32 {s(r)}, {s(ptr)}'); w.e(f's_and_b32 {s(r+1)}, {s(ptr+1)}, 0xffff')
    w.e(f's_mov_b32 {s(r+2)}, {nbytes}'); w.e(f's_mov_b32 {s(r+3)}, 0x20000')

S_W2 = [0, 1, 2, 3]; S_K, S_V, S_ONE, S_Q, S_XCH = 4, 5, 6, 7, 8
S_W3A = [0, 1, 2, 3]; S_W3B = [8, 9, 7, 6]; S_WO = [4, 5, 0, 1]
S_W4 = [2, 3, 8, 9, 7, 6, 4, 5, 0, 1, 2, 3, 8, 9]
CSA, CSB = SL(4), SL(3)
S_XF = 7
LA6 = 4
HP = 11

BARS = [f'B{t}' for t in range(24)] + ['BX', 'BKV', 'BP2', 'BX1', 'BA', 'BT1', 'BW0', 'BW1', 'BW2', 'BW3', 'BT3', 'BT3b', 'BE4'] \
     + [f'BO{t}' for t in range(4)] + [f'BF{t}' for t in range(14)] + ['BXF']

uid = [0]
def lab(p):
    uid[0] += 1
    return f'L{p}{uid[0]}'

class Poll:
    def __init__(self, base, offs, target, dst, spin):
        self.base, self.offs, self.target, self.dst, self.spin = base, offs, target, dst, spin
    def issue(self, w):
        for i, o in enumerate(self.offs): w.e(f's_load_dword {s(self.dst+i)}, {s(self.base,2)}, {o} glc')
    def check(self, w):
        a, d = lab('pc'), lab('pd')
        w.e(f's_mov_b32 {s(self.spin)}, {SPIN}')
        w.label(a)
        w._push(Ins('s_waitcnt lgkmcnt(0)')); w.sm = []; w.lg = []
        for i in range(1, len(self.offs)): w.e(f's_min_u32 {s(self.dst)}, {s(self.dst)}, {s(self.dst+i)}')
        w.e(f's_cmp_ge_u32 {s(self.dst)}, {self.target}'); w.e(f's_cbranch_scc1 {d}')
        w.e(f's_sub_u32 {s(self.spin)}, {s(self.spin)}, 1'); w.e(f's_cbranch_scc1 {d}')
        self.issue(w); w.e(f's_branch {a}')
        w.label(d); w.sm = []

def prologue():
    w = Wave('pro')
    w.e('s_cmp_ge_u32 s2, 256'); w.e('s_cbranch_scc1 Lend')
    w.e('s_load_dwordx16 s[8:23], s[0:1], 0'); w.e('s_load_dwordx8 s[24:31], s[0:1], 64')
    w.e('s_getpc_b64 s[4:5]'); w.label('Lpc')
    w.e('v_readfirstlane_b32 s3, v0'); w.e('v_and_b32 v0, 63, v0')
    w.e(f's_lshr_b32 {s(sIDX)}, s2, 3'); w.e('s_lshr_b32 s3, s3, 6')
    w.e(f's_lshl_b32 s6, {s(sIDX)}, 3'); w.e('s_add_u32 s6, s6, s3'); w.e('s_lshl_b32 s6, s6, 8')
    w.e('v_lshl_add_u32 v1, v0, 7, s6'); w.e('v_min_u32 v1, Lend-Lpc, v1')
    w.e('s_mov_b64 exec, 3'); w.e('global_load_dword v255, v1, s[4:5]'); w.e('s_mov_b64 exec, -1')
    w.e(f's_and_b32 {s(sX)}, s2, 7'); w.e(f's_and_b32 {s(sCS)}, {s(sIDX)}, 7')
    w.e(f's_lshr_b32 s6, {s(sIDX)}, 3'); w.e(f's_lshl_b32 {s(sR64)}, {s(sX)}, 2'); w.e(f's_add_u32 {s(sR64)}, {s(sR64)}, s6')
    w.e('s_cmp_lt_u32 s3, 4'); w.e('s_cbranch_scc1 Lcomp')
    w.e('s_cmp_eq_u32 s3, 6'); w.e('s_cbranch_scc1 Lsync')
    w.e('s_cmp_eq_u32 s3, 7'); w.e('s_cbranch_scc1 Lmisc')
    return w

def fork(pro, name, label):
    w = Wave(name); w.vm = list(pro.vm); w.sm = list(pro.sm); w.hist = list(pro.hist)
    if label: w.label(label)
    return w

def p4_ids(w):
    w.e(f's_cmp_lt_u32 {s(sIDX)}, 28'); w.e(f's_cselect_b32 {s(sV4)}, 1, 0'); w.e('s_cselect_b32 s6, 0, 4')
    w.e(f's_sub_u32 {s(sJ)}, {s(sIDX)}, s6')
    w.e(f's_cmp_ge_u32 {s(sJ)}, 14'); w.e('s_cselect_b32 s6, 14, 0'); w.e('s_cselect_b32 s7, 1, 0')
    w.e(f's_sub_u32 {s(sJ)}, {s(sJ)}, s6'); w.e(f's_lshl_b32 {s(sRB128)}, {s(sX)}, 1'); w.e(f's_add_u32 {s(sRB128)}, {s(sRB128)}, s7')

def role_dma(pro):
    w = fork(pro, 'dma', None)
    R_X, R_W1, R_QKV, R_W2, R_W3, R_WO, R_W4 = 40, 44, 48, 52, 56, 60, 64
    sD, sM0, sOff, sXb, sCol, sCol3, sT, sKlo, sKhi, sStep = 84, 85, 86, 87, 88, 89, 90, 91, 92, 93
    vXo, vW1k, vW3k, vW35, vLin, vKlo, vVlo, vA, vB, vC = 1, 2, 3, 4, 5, 6, 7, 8, 9, 10
    w.e(f's_sub_u32 {s(sD)}, s3, 4'); w.e(f's_lshl_b32 {s(sM0)}, {s(sD)}, 10')
    w.e(f'v_lshrrev_b32 {v(vA)}, 3, v0'); w.e(f's_lshl_b32 {s(sT)}, {s(sD)}, 3'); w.e(f'v_add_u32 {v(vA)}, {s(sT)}, {v(vA)}')
    w.e(f'v_and_b32 {v(vB)}, 7, v0')
    w.e(f'v_bfe_u32 {v(vC)}, {v(vA)}, 1, 3'); w.e(f'v_xor_b32 {v(vC)}, {v(vC)}, {v(vB)}'); w.e(f'v_lshlrev_b32 {v(vC)}, 4, {v(vC)}')
    w.e(f'v_lshl_add_u32 {v(vXo)}, {v(vA)}, 10, {v(vC)}')
    w.e(f'v_bfe_u32 {v(vC)}, v0, 4, 1'); w.e(f'v_lshlrev_b32 {v(vC)}, 2, {v(vC)}'); w.e(f'v_xor_b32 {v(vC)}, {v(vC)}, {v(vB)}'); w.e(f'v_lshlrev_b32 {v(vC)}, 4, {v(vC)}')
    w.e(f'v_lshl_add_u32 {v(vW1k)}, {v(vA)}, 10, {v(vC)}')
    w.e(f's_lshl_b32 {s(sXb)}, {s(sR64)}, 16'); w.e(f's_lshl_b32 {s(sCol)}, {s(sCS)}, 7')
    srd(w, R_X, P_X, 2 * MB); srd(w, R_W1, P_W1, 512 * KB)
    def dma(voff, r, base, add, lds, tag, sc=''):
        w.e(f's_add_u32 m0, {s(sM0)}, {lds}')
        w.e(f's_add_u32 {s(sOff)}, {s(base)}, {add}')
        w.e(f'buffer_load_dwordx4 {v(voff)}, {s(r,4)}, {s(sOff)} offen{sc} lds', tag)
    def fill_h(c):
        for n in range(4):
            dma(vXo, R_X, sXb, n * 16384 + c * 128, SL(c) + n * 2048, f'f{c}')
            dma(vW1k, R_W1, sCol, (64 * c + 16 * n) * 1024, SL(c) + 8192 + n * 2048, f'f{c}')
    def fill_w(tag, slot, voff, r, base, col, pitch, rows):
        for n in range(8): dma(voff, r, base, col + rows(n) * pitch, SL(slot) + n * 2048, tag)
    def fill(t):
        if t < 8: fill_h(t)
        elif t < 20: fill_w(f'f{t}', t % 10, vW3k, R_QKV, sCol, ((t - 8) // 4) * 1024, 3072, lambda n: 128 * ((t - 8) % 4) + 16 * n)
        else: fill_w(f'f{t}', S_W2[t - 20], vW1k, R_W2, sCol, 0, 1024, lambda n: 128 * (t - 20) + 16 * n)
    for t in range(4): fill(t)
    w.e(f'v_mul_u32_u24 {v(vW3k)}, 3072, {v(vA)}'); w.e(f'v_add_u32 {v(vW3k)}, {v(vW3k)}, {v(vC)}')
    w.e(f'v_mul_u32_u24 {v(vW35)}, 3584, {v(vA)}'); w.e(f'v_add_u32 {v(vW35)}, {v(vW35)}, {v(vC)}')
    srd(w, R_QKV, P_WQKV, 1536 * KB); srd(w, R_W2, P_W2, 512 * KB); srd(w, R_W3, P_W3, 1792 * KB)
    srd(w, R_WO, P_WO, 512 * KB); srd(w, R_W4, P_W4, 1792 * KB); srd(w, R_WS, P_WS, WS_END)
    p4_ids(w); w.e(f's_lshl_b32 {s(sCol3)}, {s(sJ)}, 8')
    w.e(f'v_lshl_add_u32 {v(vLin)}, v0, 4, {s(sM0)}')
    w.e(f'v_lshrrev_b32 {v(vKlo)}, 5, v0'); w.e(f'v_lshlrev_b32 {v(vKlo)}, 9, {v(vKlo)}'); w.e(f'v_mov_b32 {v(vVlo)}, 0x40000000')
    w.e(f's_cmp_eq_u32 {s(sX)}, 0'); w.e('s_cselect_b64 vcc, -1, 0'); w.e(f's_cselect_b32 {s(sStep)}, 0, 2048'); w.e(f's_cselect_b32 {s(sT)}, 0, 8192')
    w.e(f'v_cndmask_b32 {v(vKlo)}, {v(vLin)}, {v(vKlo)}, vcc'); w.e(f'v_cndmask_b32 {v(vVlo)}, {v(vLin)}, {v(vVlo)}, vcc')
    w.e(f's_lshl_b32 {s(sKhi)}, {s(sIDX)}, 16'); w.e(f's_lshl_b32 {s(sKlo)}, {s(sX)}, 13'); w.e(f's_add_u32 {s(sKhi)}, {s(sKhi)}, {s(sKlo)}')
    w.e(f's_sub_u32 {s(sKlo)}, {s(sKhi)}, {s(sT)}')
    w.e(f's_lshr_b32 s94, {s(sIDX)}, 2'); w.e(f's_lshl_b32 s95, {s(sX)}, 3'); w.e('s_add_u32 s94, s94, s95'); w.e('s_lshl_b32 s94, s94, 7')
    w.e(f's_lshr_b32 s95, {s(sT)}, 3'); w.e('s_sub_u32 s95, s94, s95')
    pq = Poll(P_WS, ['s94', 's95'], 4, 96, 98)
    def fill_kv(tag, slot, wsoff, vlo):
        w.e(f's_mov_b32 {s(sT)}, {s(sKlo)}')
        for n in range(4):
            dma(vlo, R_WS, sT, wsoff, SL(slot) + n * 2048, tag, ' sc1')
            if n < 3: w.e(f's_add_u32 {s(sT)}, {s(sT)}, {s(sStep)}')
        for n in range(4): dma(vLin, R_WS, sKhi, wsoff + n * 2048, SL(slot) + 8192 + n * 2048, tag, ' sc1')
    def kvq():
        pq.check(w)
        for n in range(4): dma(vLin, R_WS, sKhi, WS_Q + n * 2048, SL(S_Q) + n * 2048, 'kq', ' sc1')
        fill_kv('kq', S_K, WS_K, vKlo); fill_kv('vv', S_V, WS_V, vVlo)
    w3 = lambda p, i: (lambda: fill_w(f'w3{p}{i}', (S_W3A, S_W3B)[p][i], vW35, R_W3, sCol3, 128 * p, 3584, lambda n: 128 * i + 16 * n))
    wo = lambda i: (lambda: fill_w(f'wo{i}', S_WO[i], vW1k, R_WO, sCol, 0, 1024, lambda n: 128 * i + 16 * n))
    w4 = lambda i: (lambda: fill_w(f'w4{i}', S_W4[i], vW1k, R_W4, sCol, 0, 1024,
                                   lambda n: 128 * (2 * (i % 7) + (n >> 2)) + 64 * (i // 7) + 16 * (n & 3)))
    after = {b: [] for b in BARS}; land = {b: [] for b in BARS}
    nxt = 4
    for t in range(24):
        land[f'B{t}'].append(f'f{t}')
        k = 2 if t in (6, 7) else 1
        for _ in range(k):
            if nxt < 24: after[f'B{t}'].append((lambda t_: (lambda: fill(t_)))(nxt)); nxt += 1
    after['B23'].append(lambda: pq.issue(w))
    after['BX'].append(kvq); land['BKV'].append('kq'); land['BP2'].append('vv')
    after['BKV'] += [w3(0, 0), w3(0, 1)]; after['BP2'] += [w3(0, 2), w3(0, 3)]; land['BA'].append('w303')
    after['BA'] += [w3(1, 0), w3(1, 1), w3(1, 2)]; after['BT1'] += [w3(1, 3)]
    for i in range(4): land[f'BW{i}'].append(f'w31{i}')
    after['BW1'] += [wo(0)]; after['BW2'] += [wo(1)]; after['BW3'] += [wo(2)]; after['BT3'] += [wo(3)]; after['BT3b'] += [w4(0)]
    for i in range(4): land[f'BO{i}'].append(f'wo{i}')
    after['BE4'] += [w4(1), w4(2)]; after['BO1'] += [w4(3)]; after['BO3'] += [w4(4)]
    for i in range(14):
        land[f'BF{i}'].append(f'w4{i}')
        if i + 5 < 14: after[f'BF{i}'].append(w4(i + 5))
    for b in BARS:
        for tg in land[b]: w.wait_vm_tag(tg)
        w.bar(b)
        for f in after[b]: f()
    w.e('s_endpgm')
    return w

def role_sync(pro):
    w = fork(pro, 'sync', 'Lsync')
    srd(w, R_WS, P_WS, WS_END)
    sk = lab('nz')
    sOne = 60
    w.e(f's_mov_b32 {s(sOne)}, 1')
    w.e('s_cmp_lg_u32 s2, 0'); w.e(f's_cbranch_scc1 {sk}')
    w.e('v_lshlrev_b32 v1, 4, v0')
    for i in range(4): w.e(f'v_mov_b32 {v(4+i)}, 0')
    w.e('s_mov_b32 s6, 4096')
    for i in range(8): w.e(f'buffer_store_dwordx4 v[4:7], v1, {s(R_WS,4)}, {"s6" if i >= 4 else "0"} offen offset:{(i & 3) * 1024} sc1')
    w.waitcnt(vm=0)
    w.e(f's_atomic_add {s(sOne)}, {s(P_DBG,2)}, 0')
    w.label(sk)
    p4_ids(w)
    oH, oHm, oHp, oQ, oX1, oX1a, oX1b, oO, oO0, oA, oP = 42, 43, 44, 45, 46, 47, 48, 49, 50, 54, 56
    w.e(f's_lshl_b32 {s(oH)}, {s(sR64)}, 8'); w.e(f's_add_u32 {s(oX1)}, {s(oH)}, 132')
    w.e(f's_sub_u32 {s(oHm)}, {s(oH)}, 256'); w.e(f's_and_b32 {s(oHm)}, {s(oHm)}, 0x1f00'); w.e(f's_add_u32 {s(oHm)}, {s(oHm)}, 4')
    w.e(f's_add_u32 {s(oHp)}, {s(oH)}, 256'); w.e(f's_and_b32 {s(oHp)}, {s(oHp)}, 0x1f00'); w.e(f's_add_u32 {s(oHp)}, {s(oHp)}, 4')
    w.e(f's_add_u32 {s(oH)}, {s(oH)}, 4')
    w.e(f's_lshl_b32 {s(oQ)}, {s(sX)}, 3'); w.e(f's_add_u32 {s(oQ)}, {s(oQ)}, {s(sCS)}'); w.e(f's_lshl_b32 {s(oQ)}, {s(oQ)}, 7')
    w.e(f's_lshl_b32 {s(oX1a)}, {s(sRB128)}, 9'); w.e(f's_add_u32 {s(oX1a)}, {s(oX1a)}, 132'); w.e(f's_add_u32 {s(oX1b)}, {s(oX1a)}, 256')
    w.e(f's_add_u32 {s(oO)}, {s(oH)}, 4')
    w.e(f's_lshl_b32 {s(oO0)}, {s(sX)}, 10'); w.e(f's_add_u32 {s(oO0)}, {s(oO0)}, 8')
    for i in range(1, 4): w.e(f's_add_u32 {s(oO0+i)}, {s(oO0)}, {256*i}')
    w.e(f's_and_b32 s6, {s(sJ)}, 1'); w.e('s_lshl_b32 s6, s6, 7'); w.e(f's_lshl_b32 {s(oA)}, {s(sRB128)}, 9'); w.e(f's_add_u32 {s(oA)}, {s(oA)}, s6')
    w.e(f's_add_u32 {s(oA)}, {s(oA)}, 12'); w.e(f's_add_u32 {s(oA+1)}, {s(oA)}, 256')
    w.e(f's_lshr_b32 s6, {s(sR64)}, 1'); w.e(f's_lshl_b32 {s(oP)}, s6, 9'); w.e(f's_add_u32 {s(oP)}, {s(oP)}, 12')
    for i in range(1, 4): w.e(f's_add_u32 {s(oP+i)}, {s(oP)}, {128*i}')
    P = lambda base, offs, tgt: Poll(base, offs, tgt, 64, 68)
    pI = P(P_DBG, ['0'], 1); pH = P(P_WS, [s(oH), s(oHm), s(oHp)], 8); pX = P(P_WS, [s(oX1a), s(oX1b)], 8)
    pO = P(P_WS, [s(oO0 + i) for i in range(4)], 8); pA = P(P_WS, [s(oP), s(oP + 1)], 7); pB = P(P_WS, [s(oP + 2), s(oP + 3)], 7)
    sig = lambda off, val=sOne: (lambda: w.e(f's_atomic_add {s(val)}, {s(P_WS,2)}, {s(off)}'))
    after = {b: [] for b in BARS}; before = {b: [] for b in BARS}
    def poll(p, a, b): after[a].append(lambda: p.issue(w)); before[b].append(lambda: p.check(w))
    poll(pI, f'B{HP-3}', f'B{HP}'); after[f'B{HP}'].append(sig(oH))
    poll(pH, 'B17', 'B19'); after['B21'].append(sig(oQ))
    after['BP2'].append(sig(oX1)); poll(pX, 'BP2', 'BX1')
    after['BT1'].append(sig(oO)); poll(pO, 'BW3', 'BT3')
    after['BT3b'].append(sig(oA, sV4)); poll(pA, 'BO0', 'BO1')
    after['BO3'].append(sig(oA + 1, sV4)); poll(pB, f'BF{6-LA6}', f'BF{7-LA6}')
    for b in BARS:
        for f in before[b]: f()
        w.bar(b)
        for f in after[b]: f()
    w.e('s_endpgm')
    return w

def role_misc(pro):
    w = fork(pro, 'misc', 'Lmisc')
    R_T, R_X, R_G, R_W3, R_W4 = 40, 44, 48, 52, 56
    XG, GG, WG_, ACC = 16, 48, 80, 112
    stamps, pending, hold = [], [], [0]
    vS = 200
    def stamp(name, real=None):
        if not DIAG: return
        r = 76 + 2 * len(pending)
        if real is None:
            w.e(f's_memtime {s(r,2)}'); lane = 2 + len(stamps); stamps.append(name)
        else:
            w.e(f's_memrealtime {s(r,2)}'); lane = real
        pending.append((r, lane))
        if hold[0] > 0: hold[0] -= 1; return
        for r, lane in pending: w.e(f'v_writelane_b32 {v(vS)}, {s(r)}, {lane}')
        pending.clear()
    hold[0] = 2; stamp('', 0); stamp('start')
    w.e('v_lshlrev_b32 v1, 7, v0')
    w.e('v_lshrrev_b32 v2, 3, v0'); w.e('v_and_b32 v3, 7, v0'); w.e('v_lshlrev_b32 v3, 4, v3')
    w.e('v_lshl_add_u32 v4, v2, 10, v3'); w.e('v_mul_u32_u24 v5, 3584, v2'); w.e('v_add_u32 v5, v5, v3')
    w.e('s_cmp_lt_u32 s2, 64'); w.e(f's_cselect_b32 {s(R_T)}, {s(P_W1)}, {s(P_WQKV)}'); w.e(f's_cselect_b32 {s(R_T+1)}, {s(P_W1+1)}, {s(P_WQKV+1)}')
    w.e(f's_cselect_b32 s6, 0, 64'); w.e(f's_mov_b32 s7, {1536*KB}'); w.e(f's_cselect_b32 {s(R_T+2)}, {512*KB}, s7')
    w.e(f's_and_b32 {s(R_T+1)}, {s(R_T+1)}, 0xffff'); w.e(f's_mov_b32 {s(R_T+3)}, 0x20000')
    w.e('s_sub_u32 s6, s2, s6'); w.e('s_lshl_b32 s6, s6, 13')
    w.e(f'buffer_load_dword v254, v1, {s(R_T,4)}, s6 offen')
    srd(w, R_X, P_X, 2 * MB); srd(w, R_G, P_GW, 1024)
    w.e(f's_lshl_b32 s6, {s(sR64)}, 3'); w.e(f's_add_u32 s60, s6, {s(sCS)}'); w.e('s_lshl_b32 s6, s60, 13')
    for i in range(8): w.e(f'buffer_load_dwordx4 {v(XG+4*i,4)}, v4, {s(R_X,4)}, s6 offen offset:{128*i}')
    for i in range(8): w.e(f'buffer_load_dwordx4 {v(GG+4*i,4)}, v3, {s(R_G,4)}, 0 offen offset:{128*i}')
    srd(w, R_W3, P_W3, 1792 * KB); srd(w, R_W4, P_W4, 1792 * KB); srd(w, R_WS, P_WS, WS_END)
    p4_ids(w)
    w.e('s_mul_i32 s61, s2, 2341'); w.e('s_lshr_b32 s61, s61, 16'); w.e('s_mul_i32 s6, s61, 28'); w.e('s_sub_u32 s62, s2, s6')
    after = {b: [] for b in BARS}; before = {b: [] for b in BARS}
    def late_loads():
        w.e(f's_mul_i32 s6, s61, {64*3584}'); w.e('s_lshl_b32 s7, s62, 7'); w.e('s_add_u32 s6, s6, s7')
        for i in range(8):
            w.e(f'buffer_load_dwordx4 {v(WG_+4*i,4)}, v5, {s(R_W3,4)}, s6 offen')
            if i < 7: w.e(f's_add_u32 s6, s6, {8*3584}')
        w.e('s_cmp_lt_u32 s2, 64'); w.e(f's_cselect_b32 {s(R_T)}, {s(P_W2)}, {s(P_WO)}'); w.e(f's_cselect_b32 {s(R_T+1)}, {s(P_W2+1)}, {s(P_WO+1)}'); w.e('s_cselect_b32 s6, 0, 64')
        w.e('s_cmp_lt_u32 s2, 128'); w.e(f's_cselect_b32 {s(R_T)}, {s(R_T)}, {s(P_W4)}'); w.e(f's_cselect_b32 {s(R_T+1)}, {s(R_T+1)}, {s(P_W4+1)}'); w.e('s_cselect_b32 s6, s6, 128')
        w.e(f's_mov_b32 s7, {1792*KB}'); w.e(f's_cselect_b32 {s(R_T+2)}, {512*KB}, s7'); w.e(f's_and_b32 {s(R_T+1)}, {s(R_T+1)}, 0xffff')
        w.e('s_sub_u32 s6, s2, s6'); w.e('s_lshl_b32 s6, s6, 13')
        w.e(f'buffer_load_dword v253, v1, {s(R_T,4)}, s6 offen')
        w.e('s_add_u32 s6, s2, 128'); w.e('s_lshl_b32 s6, s6, 13')
        w.e(f'buffer_load_dword v252, v1, {s(R_W4,4)}, s6 offen')
    def gate():
        w.e('v_mov_b32 v6, 0'); w.e('v_mov_b32 v7, 0')
        for i in range(32): w.e(f'v_dot2c_f32_bf16 {v(6 + (i & 1))}, {v(XG+i)}, {v(GG+i)}')
        w.e('v_add_f32 v6, v6, v7')
        for m in ('quad_perm:[1,0,3,2]', 'quad_perm:[2,3,0,1]', 'row_half_mirror'):
            w.e(f'v_add_f32_dpp v6, v6, v6 {m} row_mask:0xf bank_mask:0xf')
        w.e(f'v_mul_f32 v6, {fl(-LOG2E)}, v6'); w.e('v_exp_f32 v6, v6'); w.e('v_add_f32 v6, 1.0, v6'); w.e('v_rcp_f32 v6, v6')
        w.e('v_lshlrev_b32 v7, 2, v2'); w.e('s_lshl_b32 s6, s60, 5'); w.e(f's_add_u32 s6, s6, {WS_G}')
        w.e('s_mov_b32 s7, 0x01010101'); w.e('s_mov_b32 exec_lo, s7'); w.e('s_mov_b32 exec_hi, s7')
        w.e(f'buffer_store_dword v6, v7, {s(R_WS,4)}, s6 offen sc1')
        w.e('s_mov_b64 exec, -1')
    def csum(i):
        def f():
            for d in range(4):
                src = WG_ + 4 * i + d
                if i == 0:
                    w.e(f'v_lshlrev_b32 {v(ACC+2*d)}, 16, {v(src)}'); w.e(f'v_and_b32 {v(ACC+2*d+1)}, 0xffff0000, {v(src)}')
                else:
                    w.e(f'v_lshlrev_b32 v8, 16, {v(src)}'); w.e(f'v_and_b32 v9, 0xffff0000, {v(src)}')
                    w.e(f'v_add_f32 {v(ACC+2*d)}, {v(ACC+2*d)}, v8'); w.e(f'v_add_f32 {v(ACC+2*d+1)}, {v(ACC+2*d+1)}, v9')
        return f
    def csum_fin():
        for c in range(8): w.e(f'v_add_f32_dpp {v(ACC+c)}, {v(ACC+c)}, {v(ACC+c)} row_ror:8 row_mask:0xf bank_mask:0xf')
        for op in ('v_permlane16_swap_b32', 'v_permlane32_swap_b32'):
            for c in range(8): w.e(f'v_mov_b32 {v(ACC+8+c)}, {v(ACC+c)}')
            for c in range(8): w.e(f'{op} {v(ACC+c)}, {v(ACC+8+c)}')
            for c in range(8): w.e(f'v_add_f32 {v(ACC+c)}, {v(ACC+c)}, {v(ACC+8+c)}')
        w.e('v_lshlrev_b32 v7, 5, v0'); w.e('s_mul_i32 s6, s61, 7168'); w.e('s_lshl_b32 s7, s62, 8'); w.e('s_add_u32 s6, s6, s7'); w.e(f's_add_u32 s6, s6, {WS_CSP}')
        w.e('s_cmp_lt_u32 s2, 224'); w.e('s_cselect_b32 s63, 1, 0'); w.e(f's_cselect_b32 s6, s6, {0x40000000}')
        w.e('s_mov_b64 exec, 0xff')
        w.e(f'buffer_store_dwordx4 {v(ACC,4)}, v7, {s(R_WS,4)}, s6 offen sc1'); w.e(f'buffer_store_dwordx4 {v(ACC+4,4)}, v7, {s(R_WS,4)}, s6 offen offset:16 sc1')
        w.e('s_mov_b64 exec, -1')
    def csig():
        w.e('s_lshr_b32 s6, s62, 1'); w.e('s_lshl_b32 s6, s6, 8'); w.e('s_add_u32 s6, s6, 136')
        w.e(f's_atomic_add s63, {s(P_WS,2)}, s6'); hold[0] = 3
    def ones():
        w.e('v_lshrrev_b32 v7, 4, v0'); w.e('v_lshlrev_b32 v7, 9, v7'); w.e('v_and_b32 v8, 15, v0'); w.e('v_lshl_add_u32 v7, v8, 4, v7'); w.e(f'v_add_u32 v7, {SL(S_ONE)}, v7')
        w.e(f's_cmp_eq_u32 {s(sX)}, 0'); w.e('s_cselect_b32 s6, 0, 0x3f803f80')
        for i in range(4): w.e(f'v_mov_b32 {v(8+i)}, s6'); w.e(f'v_mov_b32 {v(12+i)}, 0x3f803f80')
        for i in range(8): w.e(f'ds_write_b128 v7, {v(8 if i < 4 else 12, 4)} offset:{2048*i}')
        w.waitcnt(lg=0)
    pc = Poll(P_WS, ['s64'], 16, 66, 68)
    def cs_issue():
        w.e(f's_lshl_b32 s64, {s(sJ)}, 8'); w.e('s_add_u32 s64, s64, 136'); pc.issue(w); hold[0] = 1
    def cs_load():
        pc.check(w)
        w.e('v_lshlrev_b32 v7, 3, v0'); w.e(f's_lshl_b32 s6, {s(sJ)}, 9'); w.e(f's_add_u32 s6, s6, {WS_CSP}')
        for i in range(8):
            w.e(f'buffer_load_dwordx2 {v(16+2*i,2)}, v7, {s(R_WS,4)}, s6 offen sc1')
            if i < 7: w.e('s_add_u32 s6, s6, 7168')
    def cs_write(addr):
        def f():
            if addr == CSA:
                for i in range(1, 8):
                    w.e(f'v_add_f32 v16, v16, {v(16+2*i)}'); w.e(f'v_add_f32 v17, v17, {v(17+2*i)}')
            w.e(f'v_add_u32 v8, {addr}, v7'); w.e('ds_write_b64 v8, v[16:17]'); w.waitcnt(lg=0)
        return f
    after['B0'].append(gate); after['B1'].append(late_loads)
    for i in range(8): after[f'B{5 + i // 3}'].append(csum(i))
    after['B8'].append(csum_fin)
    before[f'B{HP}'].append(lambda: w.waitcnt(vm=0)); after[f'B{HP}'].append(csig)
    after['B20'].append(ones)
    after['BKV'].append(cs_issue); after['BP2'].append(cs_load); after['BX1'].append(cs_write(CSA)); after['BW1'].append(cs_write(CSB))
    for b in BARS:
        for f in before[b]: f()
        w.bar(b); stamp(b)
        for f in after[b]: f()
    if DIAG:
        w.bar('BEND'); stamp('end'); stamp('', 1)
        w.e('v_lshlrev_b32 v1, 2, v0'); w.e('s_lshl_b32 s6, s2, 9'); w.e(f's_add_u32 s6, s6, {WS_DIAG}')
        w.e(f'buffer_store_dword {v(vS)}, v1, {s(R_WS,4)}, s6 offen')
    w.e('s_endpgm')
    w.stamps = stamps
    return w

class Filler:
    def __init__(self): self.q = []
    def add(self, text, cost=4, tag=None): self.q.append((text, cost, tag))
    def call(self, f): self.q.append((f, 0, None))
    def pull(self, w, budget):
        while self.q and budget > 0:
            t, c, tag = self.q.pop(0)
            if callable(t): t()
            else: w.e(t, tag)
            budget -= c
    def flush(self, w): self.pull(w, 1 << 30)

def run_steps(w, steps, L, fill=None, budget=16):
    for i in range(min(L, len(steps))): steps[i]['rd']()
    for n, st in enumerate(steps):
        st['mm']()
        if n + L < len(steps): steps[n + L]['rd']()
        if 'post' in st: st['post']()
        if fill: fill.pull(w, budget)

def role_comp(pro):
    w = fork(pro, 'comp', 'Lcomp')
    R_OUT, R_H3 = 76, 80
    MK = 40
    sRH, sC2, sRB, sA, sB, sHV, sM1, sM2, sO1, sO2 = 84, 85, 86, 87, 88, 90, 92, 94, 96, 97
    vL16 = 1; WA = [2, 3, 4]; WB = [5, 6, 7]; XR = 16; MD = 24
    ACC0, ACC1, CS, SQ, SM, ONE, XA, WR, PK, vHo, vVo, vXr, vCom, vH = 32, 48, 64, 80, 84, 88, 92, 96, 116, 124, 125, 126, 14, 15
    X = lambda f: 128 + 4 * f
    MF = 'v_mfma_f32_32x32x16_bf16'; M4 = 'v_mfma_f32_4x4x4_16b_bf16'
    def tr(dst, bases, addr, second):
        for i, a in enumerate((addr, addr + second)):
            w.e(f'ds_read_b64_tr_b16 {v(dst+2*i,2)}, {v(bases[a >> 16])} offset:{a & 0xffff}')
    def windows(b):
        w.e(f'v_add_u32 {v(b[1])}, 0x10000, {v(b[0])}'); w.e(f'v_add_u32 {v(b[2])}, 0x20000, {v(b[0])}')
    w.e(f's_and_b32 {s(sRH)}, s3, 1'); w.e(f's_lshr_b32 {s(sC2)}, s3, 1')
    w.e(f's_lshl_b32 {s(sRB)}, {s(sR64)}, 1'); w.e(f's_add_u32 {s(sRB)}, {s(sRB)}, {s(sRH)}')
    w.e(f'v_lshlrev_b32 {v(vL16)}, 4, v0'); w.e(f'v_lshrrev_b32 {v(vH)}, 5, v0'); w.e('v_and_b32 v8, 31, v0')
    w.e('v_bfe_u32 v9, v0, 2, 2'); w.e('v_and_b32 v10, 3, v0'); w.e('v_bfe_u32 v11, v0, 4, 1'); w.e('v_bfe_u32 v12, v0, 3, 1')
    w.e(f'v_lshlrev_b32 {v(vCom)}, 7, v9'); w.e(f'v_lshl_add_u32 {v(vCom)}, v10, 3, {v(vCom)}'); w.e(f'v_lshl_add_u32 {v(vCom)}, v11, 5, {v(vCom)}'); w.e(f'v_lshl_add_u32 {v(vCom)}, v12, 6, {v(vCom)}')
    w.e(f's_lshl_b32 {s(sA)}, {s(sC2)}, 6'); w.e(f'v_xor_b32 {v(WA[0])}, {s(sA)}, {v(vCom)}'); w.e(f'v_lshl_add_u32 {v(WA[0])}, {v(vH)}, 10, {v(WA[0])}'); windows(WA)
    w.e(f's_lshl_b32 {s(sA)}, {s(sRH)}, 5'); w.e(f'v_add_u32 v9, {s(sA)}, v8'); w.e('v_lshlrev_b32 v9, 7, v9'); w.e('v_bfe_u32 v10, v0, 1, 3')
    w.e(f'v_xor_b32 v12, v10, {v(vH)}'); w.e(f'v_lshl_add_u32 {v(XA)}, v12, 4, v9')
    for k in range(1, 4): w.e(f'v_xor_b32 {v(XA+k)}, {32*k}, {v(XA)}')
    w.e(f's_lshl_b32 {s(sA)}, {s(sC2)}, 2'); w.e(f'v_xor_b32 v12, {s(sA)}, v10'); w.e(f'v_lshl_add_u32 {v(vXr)}, v12, 4, v9'); w.e(f'v_lshl_add_u32 {v(vXr)}, {v(vH)}, 3, {v(vXr)}')
    w.e(f's_lshl_b32 {s(sA)}, {s(sCS)}, 14'); w.e(f'v_add_u32 {v(vXr)}, {s(sA)}, {v(vXr)}')
    for i in range(4): w.e(f'v_mov_b32 {v(ONE+i)}, 0x3f803f80')
    w.e(f's_lshr_b32 {s(sA)}, {s(sCS)}, 2'); w.e(f's_add_u32 {s(sA)}, {s(sA)}, 1'); w.e(f's_sub_u32 {s(sB)}, 0, {s(sA)}')
    w.e(f's_bitcmp1_b32 {s(sCS)}, 1'); w.e(f's_cselect_b32 {s(sA)}, {s(sB)}, {s(sA)}')
    w.e(f's_lshl_b32 {s(sB)}, {s(sRB)}, 5'); w.e(f's_add_u32 {s(sA)}, {s(sA)}, {s(sB)}'); w.e(f'v_add_u32 v9, {s(sA)}, v8')
    w.e(f's_movk_i32 {s(sA)}, 2048'); w.e(f'v_cmp_gt_u32 {s(sHV,2)}, {s(sA)}, v9')
    w.e('v_bfe_u32 v10, v9, 5, 6'); w.e('v_and_b32 v9, 31, v9'); w.e(f'v_lshlrev_b32 {v(vHo)}, 15, v10'); w.e(f'v_lshl_add_u32 {v(vHo)}, v9, 4, {v(vHo)}'); w.e(f'v_lshl_add_u32 {v(vHo)}, {v(vH)}, 9, {v(vHo)}')
    w.e('v_and_b32 v9, 15, v0'); w.e(f'v_lshlrev_b32 {v(vVo)}, 16, v11'); w.e(f'v_lshl_add_u32 {v(vVo)}, v9, 4, {v(vVo)}'); w.e(f'v_lshl_add_u32 {v(vVo)}, {v(vH)}, 8, {v(vVo)}')
    w.e('v_and_b32 v9, 1, v0'); w.e(f'v_cmp_ne_u32 {s(sM1,2)}, 0, v9'); w.e('v_and_b32 v9, 2, v0'); w.e(f'v_cmp_ne_u32 {s(sM2,2)}, 0, v9')
    w.e(f'v_lshlrev_b32 v9, 2, {v(vH)}'); w.e('v_sub_u32 v9, v8, v9')
    for r in range(16): w.e(f'v_cmp_le_i32 {s(MK+2*r,2)}, {8*(r>>2)+(r&3)}, v9')
    w.e('v_mov_b32 v9, 0xffff'); w.e('v_mov_b32 v10, 0xffff0000')
    for p in range(8):
        w.e(f'v_cndmask_b32 {v(MD+p)}, 0, v9, {s(MK+4*p,2)}'); w.e(f'v_cndmask_b32 v12, 0, v10, {s(MK+4*p+2,2)}'); w.e(f'v_or_b32 {v(MD+p)}, {v(MD+p)}, v12')
    srd(w, R_WS, P_WS, WS_END); srd(w, R_OUT, P_OUT, 2 * MB); srd(w, R_H3, P_WS, WS_END)
    p4_ids(w); w.e(f's_mul_i32 {s(R_H3+2)}, {s(sV4)}, {WS_END}')
    sT2 = 89
    w.e(f's_lshl_b32 {s(sT2)}, {s(sCS)}, 1'); w.e(f's_add_u32 {s(sT2)}, {s(sT2)}, {s(sC2)}'); w.e(f's_lshl_b32 {s(sT2)}, {s(sT2)}, 1')

    def ln_consts(vs, vq, K):
        w.e(f'v_permlane32_swap_b32 {v(vs)}, {v(vq)}'); w.e(f'v_add_f32 {v(vs)}, {v(vs)}, {v(vq)}'); w.e(f'v_mov_b32 {v(vq)}, {v(vs)}')
        w.e(f'v_permlane32_swap_b32 {v(vs)}, {v(vq)}')
        w.e(f'v_mul_f32 {v(K)}, {fl(-1/512)}, {v(vs)}'); w.e(f'v_mul_f32 {v(vq)}, {fl(1/512)}, {v(vq)}')
        w.e(f'v_fma_f32 {v(vq)}, -{v(K)}, {v(K)}, {v(vq)}'); w.e(f'v_max_f32 {v(vq)}, 0, {v(vq)}'); w.e(f'v_add_f32 {v(vq)}, {fl(1e-5)}, {v(vq)}')
        w.e(f'v_rsq_f32 {v(vs)}, {v(vq)}')
        w.e(f'v_mul_f32 {v(K+1)}, {v(vq)}, {v(vs)}'); w.e(f'v_mul_f32 {v(K+2)}, {fl(C0)}, {v(vs)}'); w.e(f'v_mul_f32 {v(vq)}, {v(vs)}, {v(vs)}')
        w.e(f'v_mul_f32 {v(vq)}, {v(vq)}, {v(vs)}'); w.e(f'v_mul_f32 {v(K+3)}, {fl(C1)}, {v(vq)}')
    def gelu_packed(acc, cs, K, pk):
        P2 = lambda r: v(r, 2)
        for p in range(8): w.e(f'v_pk_fma_f32 {P2(acc+2*p)}, {P2(cs+2*p)}, {P2(K)}, {P2(acc+2*p)} op_sel_hi:[1,0,1]')
        for p in range(8): w.e(f'v_pk_mul_f32 {P2(cs+2*p)}, {P2(acc+2*p)}, {P2(acc+2*p)}')
        for p in range(8): w.e(f'v_pk_fma_f32 {P2(cs+2*p)}, {P2(cs+2*p)}, {P2(K+2)}, {P2(K+2)} op_sel:[0,1,0] op_sel_hi:[1,1,0]')
        for p in range(8): w.e(f'v_pk_mul_f32 {P2(cs+2*p)}, {P2(cs+2*p)}, {P2(acc+2*p)}')
        for r in range(16): w.e(f'v_exp_f32 {v(cs+r)}, {v(cs+r)}')
        for p in range(8): w.e(f'v_pk_fma_f32 {P2(cs+2*p)}, {P2(cs+2*p)}, {P2(K)}, {P2(K)} op_sel:[0,1,1] op_sel_hi:[1,1,1]')
        for r in range(16): w.e(f'v_rcp_f32 {v(cs+r)}, {v(cs+r)}')
        for p in range(8): w.e(f'v_pk_mul_f32 {P2(acc+2*p)}, {P2(acc+2*p)}, {P2(cs+2*p)}')
        for p in range(8): w.e(f'v_cvt_pk_bf16_f32 {v(pk+p)}, {v(acc+2*p)}, {v(acc+2*p+1)}')

    L = 3
    steps = []
    for n in range(32):
        c, ks = n >> 2, n & 3
        def rd(n=n, c=c, ks=ks):
            if ks == 0:
                w.bar(f'B{c}')
                if c == 4:
                    for k in range(4): w.e(f'v_add_u32 {v(XA+k)}, 0x10000, {v(XA+k)}')
                sk = lab('xr')
                w.e(f's_cmp_lg_u32 {s(sCS)}, {c}'); w.e(f's_cbranch_scc1 {sk}')
                for j in range(4):
                    w._push(Ins(f'ds_read_b64 {v(XR+2*j,2)}, {v(vXr)}'))
                    if j < 3: w._push(Ins(f'v_xor_b32 {v(vXr)}, {16*(j ^ (j+1))}, {v(vXr)}'))
                w._push(Ins('s_waitcnt lgkmcnt(0)'))
                w.label(sk)
            w.e(f'ds_read_b128 {v(X(n),4)}, {v(XA+ks)} offset:{SL(c & 3)}')
            tr(WR + 4 * (n % L), WA, SL(c) + 8192 + ks * 2048, 512)
        def mm(n=n):
            z = lambda r, k: '0' if n == 0 else v(r, k)
            wr = v(WR + 4 * (n % L), 4)
            w.e(f'{M4} {v(SQ,4)}, {v(X(n),2)}, {v(X(n),2)}, {z(SQ,4)}'); w.e(f'{M4} {v(SM,4)}, {v(ONE,2)}, {v(X(n),2)}, {z(SM,4)}')
            w.e(f'{MF} {v(ACC0,16)}, {wr}, {v(X(n),4)}, {z(ACC0,16)}')
            w.e(f'{M4} {v(SQ,4)}, {v(X(n)+2,2)}, {v(X(n)+2,2)}, {v(SQ,4)}'); w.e(f'{M4} {v(SM,4)}, {v(ONE,2)}, {v(X(n)+2,2)}, {v(SM,4)}')
            w.e(f'{MF} {v(CS,16)}, {wr}, {v(ONE,4)}, {z(CS,16)}')
        steps.append(dict(rd=rd, mm=mm))
    run_steps(w, steps, L)
    w.e(f'v_cndmask_b32 v12, {v(SQ)}, {v(SQ+1)}, {s(sM1,2)}'); w.e(f'v_cndmask_b32 v13, {v(SQ+2)}, {v(SQ+3)}, {s(sM1,2)}'); w.e(f'v_cndmask_b32 v13, v12, v13, {s(sM2,2)}')
    w.e(f'v_mov_b32 v12, {v(SM)}')
    ln_consts(12, 13, 8)
    gelu_packed(ACC0, CS, 8, PK)
    for p in range(8): w.e(f'v_cndmask_b32 {v(PK+p)}, 0, {v(PK+p)}, {s(sHV,2)}')
    w.e(f's_lshl_b32 {s(sA)}, {s(sT2)}, 10'); w.e(f's_add_u32 {s(sA)}, {s(sA)}, {WS_HS}')
    for u in range(2): w.e(f'buffer_store_dwordx4 {v(PK+4*u,4)}, {v(vHo)}, {s(R_WS,4)}, {s(sA)} offen offset:{1024*u} sc1', 'hst')

    L = 5
    fill = Filler()
    w.e(f's_lshl_b32 {s(sO1)}, {s(sT2)}, 16'); w.e(f's_lshl_b32 {s(sA)}, {s(sRB)}, 10'); w.e(f's_add_u32 {s(sO1)}, {s(sO1)}, {s(sA)}')
    def qkv_epi(i, F):
        acc = (ACC1, ACC0, ACC1)[i]
        if i == 0:
            for r in range(16): F.add(f'v_mul_f32 {v(acc+r)}, {fl(0.25*LOG2E)}, {v(acc+r)}')
        for p in range(8): F.add(f'v_cvt_pk_bf16_f32 {v(PK+p)}, {v(acc+2*p)}, {v(acc+2*p+1)}')
        base = (WS_Q, WS_K, WS_V)[i]
        F.add(f's_add_u32 {s(sA)}, {s(sO1)}, {base}')
        if i < 2:
            F.add(f's_add_u32 {s(sB)}, {s(sO1)}, {base + 65536}')
            F.add(f'buffer_store_dwordx4 {v(PK,4)}, {v(vL16)}, {s(R_WS,4)}, {s(sA)} offen sc1', 4, 'qkvst')
            F.add(f'buffer_store_dwordx4 {v(PK+4,4)}, {v(vL16)}, {s(R_WS,4)}, {s(sB)} offen sc1', 4, 'qkvst')
        else:
            for u in range(2): F.add(f'buffer_store_dwordx4 {v(PK+4*u,4)}, {v(vVo)}, {s(R_WS,4)}, {s(sA)} offen offset:{512*u} sc1', 4, 'qkvst')
    steps = []
    for n in range(96):
        i, f = n // 32, n % 32
        t = 8 + n // 8
        def rd(n=n, f=f, t=t):
            if f % 8 == 0:
                if t == HP: w.wait_vm_tag('hst')
                w.bar(f'B{t}')
            tr(WR + 4 * (n % L), WA, SL(t % 10) + (f % 8) * 2048, 512)
        def mm(n=n, i=i, f=f):
            acc = (ACC1, ACC0, ACC1)[i]; wr = v(WR + 4 * (n % L), 4); xf = v(X(f), 4)
            a, b = (wr, xf) if i < 2 else (xf, wr)
            w.e(f'{MF} {v(acc,16)}, {a}, {b}, {"0" if f == 0 else v(acc,16)}')
        st = dict(rd=rd, mm=mm)
        if f == 3 and i > 0: st['post'] = (lambda i=i: qkv_epi(i - 1, fill))
        steps.append(st)
    run_steps(w, steps, L, fill, 12)
    def splitk_bases():
        w.e(f's_lshl_b32 {s(sA)}, {s(sC2)}, 6'); w.e(f'v_xor_b32 {v(WA[0])}, {s(sA)}, {v(vCom)}'); w.e(f'v_lshl_add_u32 {v(WA[0])}, {v(vH)}, 9, {v(WA[0])}')
        w.e(f's_lshl_b32 {s(sA)}, {s(sC2)}, 13'); w.e(f'v_add_u32 {v(WA[0])}, {s(sA)}, {v(WA[0])}'); w.e(f'v_xor_b32 {v(WB[0])}, 64, {v(WA[0])}')
        windows(WA); windows(WB)
    splitk_bases()
    qkv_epi(2, fill); fill.flush(w)

    def act_base(dst, wsoff, rbmul):
        w.e(f's_mul_i32 {s(dst)}, {s(sRB)}, {rbmul}'); w.e(f's_add_u32 {s(dst)}, {s(dst)}, {wsoff}')
    def act_loads(F, base, slot_off, ring, tag=None):
        F.add(f's_add_u32 {s(sB)}, {s(base)}, {slot_off}')
        for i in range(4): F.add(f'buffer_load_dwordx4 {v(X(ring+i),4)}, {v(vL16)}, {s(R_WS,4)}, {s(sB)} offen offset:{1024*i} sc1', 4, tag)
    def splitk_steps(slots, bars, ring0, a0, a1, pre=None, first=True, n0=0):
        out = []
        for n in range(4 * len(slots)):
            sl, i = n >> 2, n & 3
            g = n0 + n
            def rd(sl=sl, i=i, g=g):
                if i == 0:
                    if pre: pre(sl)
                    w.bar(bars[sl])
                tr(WR + 8 * (g % 3), WA, SL(slots[sl]) + i * 2048, 1024); tr(WR + 8 * (g % 3) + 4, WB, SL(slots[sl]) + i * 2048, 1024)
            def mm(n=n, g=g):
                xf = v(X((ring0 + n) % 32), 4)
                w.e(f'{MF} {v(a0,16)}, {v(WR+8*(g%3),4)}, {xf}, {"0" if n == 0 else v(a0,16)}')
                w.e(f'{MF} {v(a1,16)}, {v(WR+8*(g%3)+4,4)}, {xf}, {"0" if n == 0 else v(a1,16)}')
            out.append(dict(rd=rd, mm=mm))
        return out
    act_base(sO2, WS_HS, 32768); w.e(f's_lshl_b32 {s(sA)}, {s(sC2)}, 12'); w.e(f's_add_u32 {s(sO2)}, {s(sO2)}, {s(sA)}')
    for sl in range(4): act_loads(fill, sO2, sl * 8192, 4 * sl)
    fill.flush(w)
    PK = 120
    steps = splitk_steps(S_W2, [f'B{20+i}' for i in range(4)], 0, ACC0, ACC1, pre=lambda sl: w.wait_vm_tag('qkvst') if sl == 1 else None)
    run_steps(w, steps, 3)
    def exchange(slot, src, dst, bar, between=None):
        w.e(f's_lshl_b32 {s(sA)}, s3, 12'); w.e(f's_add_u32 {s(sA)}, {s(sA)}, {SL(slot)}'); w.e(f'v_add_u32 v12, {s(sA)}, {v(vL16)}'); w.e('v_xor_b32 v13, 0x2000, v12')
        for q in range(4): w.e(f'ds_write_b128 v12, {v(src+4*q,4)} offset:{1024*q}')
        if between: between()
        w.waitcnt(lg=0); w.bar(bar)
        for q in range(4): w.e(f'ds_read_b128 {v(dst+4*q,4)}, v13 offset:{1024*q}')
    def add_x():
        for p in range(8):
            w.e(f'v_lshlrev_b32 {v(80+2*p)}, 16, {v(XR+p)}'); w.e(f'v_and_b32 {v(81+2*p)}, 0xffff0000, {v(XR+p)}')
        for p in range(8): w.e(f'v_pk_add_f32 {v(ACC0+2*p,2)}, {v(ACC0+2*p,2)}, {v(80+2*p,2)}')
    exchange(S_XCH, ACC1, CS, 'BX', add_x)
    act_base(sO2, WS_X1, 32768); w.e(f's_lshl_b32 {s(sA)}, {s(sT2)}, 10'); w.e(f's_add_u32 {s(sO2)}, {s(sO2)}, {s(sA)}')
    for p in range(8): w.e(f'v_pk_add_f32 {v(ACC0+2*p,2)}, {v(ACC0+2*p,2)}, {v(CS+2*p,2)}')
    for p in range(8): w.e(f'v_cvt_pk_bf16_f32 {v(XR+p)}, {v(ACC0+2*p)}, {v(ACC0+2*p+1)}')
    for u in range(2): w.e(f'buffer_store_dwordx4 {v(XR+4*u,4)}, {v(vL16)}, {s(R_WS,4)}, {s(sO2)} offen offset:{1024*u} sc1', 'x1st')
    w.e(f'v_pk_mul_f32 v[10:11], {v(ACC0,2)}, {v(ACC0,2)}'); w.e(f'v_pk_add_f32 v[8:9], {v(ACC0,2)}, {v(ACC0+2,2)}')
    for p in range(1, 8):
        w.e(f'v_pk_fma_f32 v[10:11], {v(ACC0+2*p,2)}, {v(ACC0+2*p,2)}, v[10:11]')
        if p > 1: w.e(f'v_pk_add_f32 v[8:9], v[8:9], {v(ACC0+2*p,2)}')
    w.e('v_add_f32 v8, v8, v9'); w.e('v_add_f32 v10, v10, v11')
    w.e('v_and_b32 v9, 31, v0'); w.e('v_lshlrev_b32 v9, 3, v9'); w.e(f'v_lshl_add_u32 v9, {v(vH)}, 2, v9')
    w.e('v_permlane32_swap_b32 v8, v10'); w.e('v_add_f32 v8, v8, v10')
    act_base(sO2, WS_STATS, 4096); w.e(f's_lshl_b32 {s(sA)}, {s(sT2)}, 7'); w.e(f's_add_u32 {s(sO2)}, {s(sO2)}, {s(sA)}')
    w.e(f'buffer_store_dword v8, v9, {s(R_WS,4)}, {s(sO2)} offen sc1', 'x1st')

    O, NM, SA, SB, KF, VF, SC, M, KP, PD, PO = 32, 48, 64, 80, 96, 104, 224, 240, 188, 208, 216
    QF = [8, 4]; vKa, vVa, mx, tm = 2, 3, 12, 13
    w.e(f's_lshl_b32 {s(sA)}, s3, 10'); w.e(f's_add_u32 {s(sB)}, {s(sA)}, {SL(S_K)}'); w.e(f'v_add_u32 {v(vKa)}, {s(sB)}, {v(vL16)}')
    w.e('v_and_b32 v12, 15, v0'); w.e(f'v_lshl_add_u32 v12, v12, 4, {s(sA)}')
    w.e(f'v_lshl_add_u32 {v(vVa)}, {v(vH)}, 8, v12'); w.e(f'v_add_u32 {v(vVa)}, {SL(S_V)}, {v(vVa)}'); w.e(f'v_add_u32 v12, {SL(S_ONE)}, v12')
    w.e('s_mov_b32 vcc_lo, 0xffff0000'); w.e('s_mov_b32 vcc_hi, 0xffff0000'); w.e(f'v_cndmask_b32 {v(vVa)}, {v(vVa)}, v12, vcc')
    w.e(f's_lshl_b32 {s(sO1)}, {s(sX)}, 3'); w.e(f's_add_u32 {s(sO1)}, {s(sO1)}, s3'); w.e(f's_lshl_b32 {s(sO1)}, {s(sO1)}, 5'); w.e(f's_add_u32 {s(sO1)}, {s(sO1)}, {s(sIDX)}')
    w.e(f's_lshl_b32 {s(sO1)}, {s(sO1)}, 10'); w.e(f's_add_u32 {s(sO1)}, {s(sO1)}, {WS_O}')
    sR4 = 98
    w.e(f's_lshl_b32 {s(sR4)}, {s(sRB128)}, 2'); w.e(f's_add_u32 {s(sR4)}, {s(sR4)}, s3')
    w.e(f's_lshl_b32 {s(sO2)}, {s(sR4)}, 15'); w.e(f's_add_u32 {s(sO2)}, {s(sO2)}, {WS_X1}')
    w.bar('BKV')
    for r in range(2): w.e(f'ds_read_b128 {v(QF[r],4)}, {v(vKa)} offset:{SL(S_Q)-SL(S_K)+4096*r}')
    def finish_o(r):
        w.e(f'v_rcp_f32 {v(tm)}, {v(O+8)}')
        for i in range(8): w.e(f'v_mul_f32 {v(O+i)}, {v(O+i)}, {v(tm)}')
        for p in range(4): w.e(f'v_cvt_pk_bf16_f32 {v(O+8+p)}, {v(O+2*p)}, {v(O+2*p+1)}')
        if r: w.e(f's_add_u32 {s(sO1)}, {s(sO1)}, {4*32768}')
        w.e(f'buffer_store_dwordx4 {v(O+8,4)}, {v(vL16)}, {s(R_WS,4)}, {s(sO1)} offen sc1', 'ost')
    xl = Filler()
    for g in range(8): act_loads(xl, sO2, 4096 * g, 4 * g)
    for r in range(2):
        q = v(QF[r], 4)
        kread = lambda dst, j: w.e(f'ds_read_b128 {v(dst,4)}, {v(vKa)} offset:{(4*r+j)*1024}')
        vread = lambda e, j, u: w.e(f'ds_read_b128 {v(VF+4*e,4)}, {v(vVa)} offset:{(4*r+j)*1024+512*u}')
        for j in (8, 0, 1, 2, 3, 4, 5, 6, 7): kread(KP + 4 * j, j)
        S1 = lambda dst, j: w.e(f'{MF} {v(dst,16)}, {v(KP+4*j,4)}, {q}, 0')
        def mxb(b, first=False):
            if first: w.e(f'v_max_f32 {v(mx)}, {v(b)}, {v(b+1)}')
            for p in range(1 if first else 0, 8): w.e(f'v_max3_f32 {v(mx)}, {v(mx)}, {v(b+2*p)}, {v(b+2*p+1)}')
        S1(M, 8); S1(SA, 0); S1(SB, 1); S1(SC, 2)
        if r == 1: finish_o(0)
        for i in range(16): w.e(f'v_cndmask_b32 {v(M+i)}, {v(SA+i)}, {v(M+i)}, {s(MK+2*i,2)}')
        S1(SA, 3); mxb(M, True); mxb(SB); S1(SB, 4); mxb(SC); S1(SC, 5); mxb(SA); S1(SA, 6); mxb(SB); S1(SB, 7)
        kread(KF + 4, 1); kread(KF, 2)
        mxb(SC); mxb(SA)
        if r == 0: w.wait_vm_tag('x1st'); w.bar('BP2')
        else: w.bar('BX1')
        vread(0, 8, 0); vread(1, 8, 1); vread(2, 0, 0); vread(3, 0, 1)
        mxb(SB)
        w.e(f'v_mov_b32 {v(tm)}, {v(mx)}'); w.e(f'v_permlane32_swap_b32 {v(mx)}, {v(tm)}'); w.e(f'v_max_f32 {v(mx)}, {v(mx)}, {v(tm)}')
        for p in range(8): w.e(f'v_pk_mul_f32 {v(NM+2*p,2)}, {v(mx,2)}, -1.0 op_sel_hi:[0,0]')
        for p in range(8): w.e(f'v_pk_add_f32 {v(M+2*p,2)}, {v(M+2*p,2)}, {v(NM,2)}')
        SBUF = lambda j: SA if j & 1 else SB
        S2 = lambda j: w.e(f'{MF} {v(SBUF(j),16)}, {v(KF+4*(j&1),4)}, {q}, {v(NM,16)}')
        PV = lambda e, p, first=False: w.e(f'{MF} {v(O,16)}, {v(VF+4*e,4)}, {v(p,4)}, {"0" if first else v(O,16)}')
        ex = lambda b, a, z: [w.e(f'v_exp_f32 {v(b+i)}, {v(b+i)}') for i in range(a, z)]
        cv = lambda b, a, z: [w.e(f'v_cvt_pk_bf16_f32 {v(PK+p)}, {v(b+2*p)}, {v(b+2*p+1)}') for p in range(a, z)]
        ld = (lambda n: xl.pull(w, n)) if r == 1 else (lambda n: None)
        S2(1); kread(KF + 4, 3)
        ld(8); ex(M, 0, 9); cv(M, 0, 4); ld(4)
        for p in range(4): w.e(f'v_and_b32 {v(PD+p)}, {v(PK+p)}, {v(MD+p)}')
        for p in range(4): w.e(f'v_bfi_b32 {v(PO+p)}, {v(MD+p)}, 0, {v(PK+p)}')
        PV(0, PD, True); ex(M, 9, 13); PV(2, PO); vread(2, 1, 0); ex(M, 13, 16); ld(4); cv(M, 4, 8)
        for p in range(4, 8): w.e(f'v_and_b32 {v(PD+p)}, {v(PK+p)}, {v(MD+p)}')
        for p in range(4, 8): w.e(f'v_bfi_b32 {v(PO+p)}, {v(MD+p)}, 0, {v(PK+p)}')
        PV(3, PO + 4); vread(3, 1, 1)
        pend = lambda: (PV(1, PD + 4), vread(0, 2, 0), vread(1, 2, 1))
        for j in range(1, 8):
            b = SBUF(j); e = 2 * (j & 1)
            ex(b, 0, 3); pend(); ex(b, 3, 6)
            if j < 7:
                S2(j + 1)
                if j + 3 < 8: kread(KF + 4 * ((j + 1) & 1), j + 3)
            ld(4); ex(b, 6, 9); cv(b, 0, 4); ex(b, 9, 11); PV(e, PK); ld(4); ex(b, 11, 16); ld(4 if j & 1 else 8); cv(b, 4, 8)
            def pend(j=j, e=e):
                PV(e + 1, PK + 4)
                if j + 2 < 8: vread(e, j + 2, 0); vread(e + 1, j + 2, 1)
        w.e('s_nop 1'); pend()

    T, CS4, AC = 32, 48, [64, 80]
    vCs = 13
    w.e(f'v_lshl_add_u32 {v(WA[0])}, {v(vH)}, 9, {v(vCom)}'); w.e(f'v_xor_b32 {v(WB[0])}, 64, {v(WA[0])}'); windows(WA); windows(WB)
    xl.flush(w)
    w.e(f's_lshl_b32 {s(sA)}, {s(sR4)}, 12'); w.e(f's_add_u32 {s(sA)}, {s(sA)}, {WS_STATS}')
    w.e('v_and_b32 v9, 31, v0'); w.e('v_lshlrev_b32 v9, 3, v9'); w.e(f'v_lshl_add_u32 v9, {v(vH)}, 11, v9')
    finish_o(1)
    for i in range(8): w.e(f'buffer_load_dwordx2 {v(CS4+2*i,2)}, v9, {s(R_WS,4)}, {s(sA)} offen offset:{256*i} sc1')
    w.e(f's_mul_i32 {s(sO1)}, {s(sR4)}, {112*1024}'); w.e(f's_lshl_b32 {s(sA)}, {s(sJ)}, 13'); w.e(f's_add_u32 {s(sO1)}, {s(sO1)}, {s(sA)}'); w.e(f's_add_u32 {s(sO1)}, {s(sO1)}, {WS_H3}')
    act_base(sO2, WS_O, 32768); w.e(f's_lshl_b32 {s(sA)}, {s(sC2)}, 12'); w.e(f's_add_u32 {s(sO2)}, {s(sO2)}, {s(sA)}')
    L = 5
    fill = Filler()
    def cs_reads(F, t):
        base = (CSA, CSB)[t >> 1] + 128 * t
        F.add(f'v_lshlrev_b32 {v(vCs)}, 4, {v(vH)}'); F.add(f'v_add_u32 {v(vCs)}, {base}, {v(vCs)}')
        for j in range(4): F.add(f'ds_read_b128 {v(CS4+4*j,4)}, {v(vCs)} offset:{32*j}', 4, 'cs')
    def h3_store(F, t, u):
        if u == 0: F.add(f's_add_u32 {s(sA)}, {s(sO1)}, {2048*t}')
        F.add(f'buffer_store_dwordx4 {v(PK+4*u,4)}, {v(vL16)}, {s(R_H3,4)}, {s(sA)} offen offset:{1024*u} sc1', 4, f'h3st{t >> 1}')
    def gelu_plain(F, t):
        acc = AC[t & 1]; K = 8
        for g in range(4):
            R = range(4 * g, 4 * g + 4); tt = lambda r: v(T + (r & 7))
            for r in R: F.add(f'v_fma_f32 {v(acc+r)}, {v(CS4+r)}, {v(K)}, {v(acc+r)}')
            for r in R: F.add(f'v_mul_f32 {tt(r)}, {v(acc+r)}, {v(acc+r)}')
            for r in R: F.add(f'v_fma_f32 {tt(r)}, {tt(r)}, {v(K+3)}, {v(K+2)}')
            for r in R: F.add(f'v_mul_f32 {tt(r)}, {tt(r)}, {v(acc+r)}')
            for r in R: F.add(f'v_exp_f32 {tt(r)}, {tt(r)}', 8)
            for r in R: F.add(f'v_fma_f32 {tt(r)}, {tt(r)}, {v(K+1)}, {v(K+1)}')
            for r in R: F.add(f'v_rcp_f32 {tt(r)}, {tt(r)}', 8)
            for r in R: F.add(f'v_mul_f32 {v(acc+r)}, {v(acc+r)}, {tt(r)}')
            for p in (2 * g, 2 * g + 1): F.add(f'v_cvt_pk_bf16_f32 {v(PK+p)}, {v(acc+2*p)}, {v(acc+2*p+1)}')
            if g & 1: h3_store(F, t, g >> 1)
    def stats():
        for i in range(1, 8):
            w.e(f'v_add_f32 {v(CS4)}, {v(CS4)}, {v(CS4+2*i)}'); w.e(f'v_add_f32 {v(CS4+1)}, {v(CS4+1)}, {v(CS4+2*i+1)}')
        ln_consts(CS4, CS4 + 1, 8)
    ol = Filler()
    for sl in range(4): act_loads(ol, sO2, sl * 8192, 4 * sl)
    steps = []
    for n in range(128):
        t, f = n >> 5, n & 31
        def rd(n=n, t=t, f=f):
            if n == 0: w.bar('BA')
            if t == 2 and f % 8 == 0:
                if f == 8: w.wait_lg_tag('cs')
                w.bar(f'BW{f // 8}')
            tr(WR + 4 * (n % L), (WA, WB)[t & 1], SL((S_W3A, S_W3B)[t >> 1][f >> 3]) + (f & 7) * 2048, 1024)
        def mm(n=n, t=t, f=f):
            w.e(f'{MF} {v(AC[t&1],16)}, {v(WR+4*(n%L),4)}, {v(X(f),4)}, {"0" if f == 0 else v(AC[t&1],16)}')
        st = dict(rd=rd, mm=mm)
        def post(t=t, f=f):
            if f == 31:
                fill.flush(w)
                if t == 0: stats(); w.wait_vm_tag('ost'); w.bar('BT1')
                if t == 2: w.bar('BT3')
                cs_reads(fill, t)
                if t < 3: fill.add('s_nop 1'); gelu_plain(fill, t)
            if t == 3 and f == 16: w.wait_vm_tag('h3st0'); w.bar('BT3b')
            if t == 3 and f >= 4 and f % 2 == 0: ol.pull(w, 6)
        st['post'] = post
        steps.append(st)
    run_steps(w, steps, L, fill, 22)
    fill.flush(w); ol.flush(w)
    splitk_bases()
    w.waitcnt(lg=0); w.bar('BE4')
    gelu_packed(AC[1], CS4, 8, PK)
    h3_store(fill, 3, 0); h3_store(fill, 3, 1); fill.flush(w)

    A0, A1, B0, B1, vG = 32, 48, 64, 80, 24
    w.e('v_and_b32 v9, 31, v0'); w.e('v_lshlrev_b32 v10, 2, v9'); w.e(f's_lshl_b32 {s(sA)}, {s(sRB)}, 7'); w.e(f's_add_u32 {s(sA)}, {s(sA)}, {WS_G}')
    w.e(f'buffer_load_dword {v(vG)}, v10, {s(R_WS,4)}, {s(sA)} offen sc1')
    act_base(sO2, WS_H3, 112 * 1024); w.e(f's_lshl_b32 {s(sA)}, {s(sC2)}, 13'); w.e(f's_add_u32 {s(sO2)}, {s(sO2)}, {s(sA)}')
    h3l = lambda i: act_loads(fill, sO2, (i % 7) * 16384 + (i // 7) * 4096, (16 + 4 * i) % 32)
    s5 = splitk_steps(S_WO, [f'BO{i}' for i in range(4)], 0, A0, A1, pre=lambda sl: w.wait_vm_tag('h3st1') if sl == 3 else None)
    s6 = splitk_steps(S_W4, [f'BF{i}' for i in range(14)], 16, B0, B1, n0=16)
    for k in range(LA6): s5[2 + 3 * k]['post'] = (lambda k=k: h3l(k))
    for i in range(14 - LA6): s6[4 * i]['post'] = (lambda i=i: h3l(i + LA6))
    def mixprep():
        fill.add(f'v_sub_f32 {v(vG+1)}, 1.0, {v(vG)}')
        for r in range(32): fill.add(f'v_mul_f32 {v(A0+r)}, {v(A0+r)}, {v(vG)}')
        for p in range(8):
            fill.add(f'v_lshlrev_b32 v10, 16, {v(XR+p)}'); fill.add(f'v_and_b32 v11, 0xffff0000, {v(XR+p)}')
            fill.add(f'v_fmac_f32 {v(A0+2*p)}, v10, {v(vG+1)}'); fill.add(f'v_fmac_f32 {v(A0+2*p+1)}, v11, {v(vG+1)}')
        fill.add(f'v_lshlrev_b32 v10, 10, v9'); fill.add(f'v_lshl_add_u32 v10, {v(vH)}, 4, v10')
        fill.add(f's_lshl_b32 {s(sO1)}, {s(sRB)}, 15'); fill.add(f's_lshl_b32 {s(sA)}, {s(sT2)}, 5'); fill.add(f's_add_u32 {s(sO1)}, {s(sO1)}, {s(sA)}')
    s6[41]['post'] = mixprep
    run_steps(w, s5 + s6, 3, fill, 24)
    fill.flush(w)
    g1 = v(vG, 2)
    for p in range(8): w.e(f'v_pk_fma_f32 {v(A1+2*p,2)}, {v(B1+2*p,2)}, {g1}, {v(A1+2*p,2)} op_sel:[0,1,0] op_sel_hi:[1,1,1]')
    def own():
        for p in range(8): w.e(f'v_pk_fma_f32 {v(A0+2*p,2)}, {v(B0+2*p,2)}, {g1}, {v(A0+2*p,2)} op_sel:[0,1,0] op_sel_hi:[1,1,1]')
    exchange(S_XF, A1, B1, 'BXF', own)
    for p in range(8): w.e(f'v_pk_add_f32 {v(A0+2*p,2)}, {v(A0+2*p,2)}, {v(B1+2*p,2)}')
    for p in range(8): w.e(f'v_cvt_pk_bf16_f32 {v(PK+p)}, {v(A0+2*p)}, {v(A0+2*p+1)}')
    for u in range(2):
        w.e(f'v_permlane32_swap_b32 {v(PK+4*u)}, {v(PK+4*u+2)}'); w.e(f'v_permlane32_swap_b32 {v(PK+4*u+1)}, {v(PK+4*u+3)}')
        w.e(f'buffer_store_dwordx4 {v(PK+4*u,4)}, v10, {s(R_OUT,4)}, {s(sO1)} offen offset:{32*u}')
    if DIAG: w.waitcnt(vm=0); w.bar('BEND')
    w.e('s_endpgm')
    return w

def main():
    out = sys.argv[1]
    pro = prologue()
    d, y, m, c = role_dma(pro), role_sync(pro), role_misc(pro), role_comp(pro)
    for r in (d, y, m, c):
        bars = [b for b in r.bars if b != 'BEND']
        assert bars == BARS, (r.name, [(a, b) for a, b in zip(bars, BARS) if a != b][:3], len(bars), len(BARS))
        print(r.name, 'instr', r.count, 'nop states', r.nops, file=sys.stderr)
    hdr = open('gated_mix__sliding_block__mixer_s_mlp__prompt.s.ref').read().split('; Override launch')[0]
    txt = hdr + f'''; One persistent launch: 256 workgroups (one per CU), 4 compute waves + 2 LDS-DMA waves + 1 hand-off wave + 1 helper wave.
; @launch grid=(256,1,1) block=(512,1,1) lds=163840
.amdgcn_target "amdgcn-amd-amdhsa--gfx950"
.text
.globl {NAME}
.p2align 8
.type {NAME},@function
{NAME}:
''' + '\n'.join(x.text() for x in (pro, d, m, y, c)) + f'''
Lend:
    s_endpgm
.section .rodata,"a"
.p2align 6
.amdhsa_kernel {NAME}
  .amdhsa_next_free_vgpr 256
  .amdhsa_next_free_sgpr 102
  .amdhsa_accum_offset 256
  .amdhsa_group_segment_fixed_size 0
  .amdhsa_kernarg_size 96
  .amdhsa_user_sgpr_count 2
  .amdhsa_user_sgpr_kernarg_segment_ptr 1
  .amdhsa_system_sgpr_workgroup_id_x 1
.end_amdhsa_kernel
'''
    open(out, 'w').write(txt)
    if DIAG: open(out + '.stamps', 'w').write(' '.join(m.stamps))
main()
```

```python
KB = 1024
MB = 1024 * 1024
WS_CNT = 0
CNT_H = 128 * 128
CNT_O = 160 * 128
CNT_CS = 192 * 128
WS_G = 32 * KB
WS_CSP = 40 * KB
WS_DIAG = 128 * KB
WS_STATS = 256 * KB
WS_HS = 1 * MB
WS_X1 = 3 * MB
WS_O = 5 * MB
WS_Q = 7 * MB
WS_K = 9 * MB
WS_V = 11 * MB
WS_H3 = 13 * MB
WS_END = 20 * MB
```

```python
import sys, copy, struct
from asmlib import *
from layout import *

DIAG = '--diag' in sys.argv
OPT = dict(touch=1, codepf=1)
for a in sys.argv[2:]:
    if '=' in a: k_, v_ = a.split('='); assert k_ in OPT, k_; OPT[k_] = int(v_)
NAME = 'gated_mix__sliding_block__mixer_s_mlp__prompt_kernel'
def fl(x): return '0x%08x' % struct.unpack('<I', struct.pack('<f', x))[0]
LOG2E = 1.4426950408889634
C0 = -2.0 * LOG2E * 0.7978845608028654
C1 = C0 * 0.044715
SL = lambda i: i * 16384
SPIN = 400000

P_X, P_WQKV, P_WO, P_W1, P_W2, P_W3, P_W4, P_GW, P_OUT, P_DBG, P_WS = 8, 10, 12, 16, 18, 20, 22, 24, 26, 28, 30
sW, sX, sIDX, sCS, sR64, sRB128, sJ, sV4 = 3, 32, 33, 34, 35, 36, 37, 38
R_WS = 72

def srd(w, r, ptr, nbytes):
    w.e(f's_mov_b32 {s(r)}, {s(ptr)}'); w.e(f's_and_b32 {s(r+1)}, {s(ptr+1)}, 0xffff')
    w.e(f's_mov_b32 {s(r+2)}, {nbytes}'); w.e(f's_mov_b32 {s(r+3)}, 0x20000')

S_W2 = [0, 1, 2, 3]; S_K, S_V, S_ONE, S_Q, S_XCH = 4, 5, 6, 7, 8
S_W3A = [0, 1, 2, 3]; S_W3B = [8, 9, 7, 6]; S_WO = [4, 5, 0, 1]
S_W4 = [2, 3, 8, 9, 7, 6, 4, 5, 0, 1, 2, 3, 8, 9]
CSA, CSB = SL(4), SL(3)
S_XF = 7
LA6 = 4
HP = 12

BARS = [f'B{t}' for t in range(24)] + ['BX', 'BKV', 'BP2', 'BX1', 'BA', 'BT1', 'BW0', 'BW1', 'BW2', 'BW3', 'BT3', 'BT3b', 'BE4'] \
     + [f'BO{t}' for t in range(4)] + [f'BF{t}' for t in range(14)] + ['BXF']

uid = [0]
def lab(p):
    uid[0] += 1
    return f'L{p}{uid[0]}'

class Poll:
    def __init__(self, base, offs, target, dst, spin, cached=False):
        self.base, self.offs, self.target, self.dst, self.spin, self.cached = base, offs, target, dst, spin, cached
    def issue(self, w, retry=False):
        g = '' if self.cached and not retry else ' glc'
        for i, o in enumerate(self.offs): w.e(f's_load_dword {s(self.dst+i)}, {s(self.base,2)}, {o}{g}')
    def check(self, w):
        a, d = lab('pc'), lab('pd')
        w.e(f's_mov_b32 {s(self.spin)}, {SPIN}')
        w.label(a)
        w._push(Ins('s_waitcnt lgkmcnt(0)')); w.sm = []; w.lg = []
        for i in range(1, len(self.offs)): w.e(f's_min_u32 {s(self.dst)}, {s(self.dst)}, {s(self.dst+i)}')
        w.e(f's_cmp_ge_u32 {s(self.dst)}, {self.target}'); w.e(f's_cbranch_scc1 {d}')
        w.e(f's_sub_u32 {s(self.spin)}, {s(self.spin)}, 1'); w.e(f's_cbranch_scc1 {d}')
        self.issue(w, True); w.e(f's_branch {a}')
        w.label(d); w.sm = []

def prologue():
    w = Wave('pro')
    w.e('s_cmp_ge_u32 s2, 256'); w.e('s_cbranch_scc1 Lend')
    w.e('s_load_dwordx16 s[8:23], s[0:1], 0'); w.e('s_load_dwordx8 s[24:31], s[0:1], 64')
    w.e('s_getpc_b64 s[4:5]'); w.label('Lpc')
    w.e('v_readfirstlane_b32 s3, v0'); w.e('v_and_b32 v0, 63, v0')
    w.e(f's_lshr_b32 {s(sIDX)}, s2, 3'); w.e('s_lshr_b32 s3, s3, 6')
    w.e(f's_lshl_b32 s6, {s(sIDX)}, 3'); w.e('s_add_u32 s6, s6, s3'); w.e('s_lshl_b32 s6, s6, 8')
    w.e('v_lshl_add_u32 v1, v0, 7, s6'); w.e('v_min_u32 v1, Lend-Lpc, v1')
    if OPT['codepf']: w.e('s_mov_b64 exec, 3'); w.e('global_load_dword v255, v1, s[4:5]'); w.e('s_mov_b64 exec, -1')
    w.e(f's_and_b32 {s(sX)}, s2, 7'); w.e(f's_and_b32 {s(sCS)}, {s(sIDX)}, 7')
    w.e(f's_lshr_b32 s6, {s(sIDX)}, 3'); w.e(f's_lshl_b32 {s(sR64)}, {s(sX)}, 2'); w.e(f's_add_u32 {s(sR64)}, {s(sR64)}, s6')
    w.e('s_cmp_lt_u32 s3, 4'); w.e('s_cbranch_scc1 Lcomp')
    w.e('s_cmp_eq_u32 s3, 6'); w.e('s_cbranch_scc1 Lsync')
    w.e('s_cmp_eq_u32 s3, 7'); w.e('s_cbranch_scc1 Lmisc')
    return w

def fork(pro, name, label):
    w = Wave(name); w.vm = list(pro.vm); w.sm = list(pro.sm); w.hist = list(pro.hist)
    if label: w.label(label)
    return w

def p4_ids(w):
    w.e(f's_cmp_lt_u32 {s(sIDX)}, 28'); w.e(f's_cselect_b32 {s(sV4)}, 1, 0'); w.e('s_cselect_b32 s6, 0, 4')
    w.e(f's_sub_u32 {s(sJ)}, {s(sIDX)}, s6')
    w.e(f's_cmp_ge_u32 {s(sJ)}, 14'); w.e('s_cselect_b32 s6, 14, 0'); w.e('s_cselect_b32 s7, 1, 0')
    w.e(f's_sub_u32 {s(sJ)}, {s(sJ)}, s6'); w.e(f's_lshl_b32 {s(sRB128)}, {s(sX)}, 1'); w.e(f's_add_u32 {s(sRB128)}, {s(sRB128)}, s7')

def role_dma(pro):
    w = fork(pro, 'dma', None)
    R_X, R_W1, R_QKV, R_W2, R_W3, R_WO, R_W4 = 40, 44, 48, 52, 56, 60, 64
    sD, sM0, sOff, sXb, sCol, sCol3, sT, sKlo, sKhi, sStep = 84, 85, 86, 87, 88, 89, 90, 91, 92, 93
    vXo, vW1k, vW3k, vW35, vLin, vKlo, vVlo, vA, vB, vC = 1, 2, 3, 4, 5, 6, 7, 8, 9, 10
    w.e(f's_sub_u32 {s(sD)}, s3, 4'); w.e(f's_lshl_b32 {s(sM0)}, {s(sD)}, 10')
    w.e(f'v_lshrrev_b32 {v(vA)}, 3, v0'); w.e(f's_lshl_b32 {s(sT)}, {s(sD)}, 3'); w.e(f'v_add_u32 {v(vA)}, {s(sT)}, {v(vA)}')
    w.e(f'v_and_b32 {v(vB)}, 7, v0')
    w.e(f'v_bfe_u32 {v(vC)}, {v(vA)}, 1, 3'); w.e(f'v_xor_b32 {v(vC)}, {v(vC)}, {v(vB)}'); w.e(f'v_lshlrev_b32 {v(vC)}, 4, {v(vC)}')
    w.e(f'v_lshl_add_u32 {v(vXo)}, {v(vA)}, 10, {v(vC)}')
    w.e(f'v_bfe_u32 {v(vC)}, v0, 4, 1'); w.e(f'v_lshlrev_b32 {v(vC)}, 2, {v(vC)}'); w.e(f'v_xor_b32 {v(vC)}, {v(vC)}, {v(vB)}'); w.e(f'v_lshlrev_b32 {v(vC)}, 4, {v(vC)}')
    w.e(f'v_lshl_add_u32 {v(vW1k)}, {v(vA)}, 10, {v(vC)}')
    w.e(f's_lshl_b32 {s(sXb)}, {s(sR64)}, 16'); w.e(f's_lshl_b32 {s(sCol)}, {s(sCS)}, 7')
    srd(w, R_X, P_X, 2 * MB); srd(w, R_W1, P_W1, 512 * KB)
    def dma(voff, r, base, add, lds, tag, sc=''):
        w.e(f's_add_u32 m0, {s(sM0)}, {lds}')
        w.e(f's_add_u32 {s(sOff)}, {s(base)}, {add}')
        w.e(f'buffer_load_dwordx4 {v(voff)}, {s(r,4)}, {s(sOff)} offen{sc} lds', tag)
    def fill_h(c):
        for n in range(4):
            dma(vXo, R_X, sXb, n * 16384 + c * 128, SL(c) + n * 2048, f'f{c}')
            dma(vW1k, R_W1, sCol, (64 * c + 16 * n) * 1024, SL(c) + 8192 + n * 2048, f'f{c}')
    def fill_w(tag, slot, voff, r, base, col, pitch, rows):
        for n in range(8): dma(voff, r, base, col + rows(n) * pitch, SL(slot) + n * 2048, tag)
    def fill(t):
        if t < 8: fill_h(t)
        elif t < 20: fill_w(f'f{t}', t % 10, vW3k, R_QKV, sCol, ((t - 8) // 4) * 1024, 3072, lambda n: 128 * ((t - 8) % 4) + 16 * n)
        else: fill_w(f'f{t}', S_W2[t - 20], vW1k, R_W2, sCol, 0, 1024, lambda n: 128 * (t - 20) + 16 * n)
    for t in range(4): fill(t)
    w.e(f'v_mul_u32_u24 {v(vW3k)}, 3072, {v(vA)}'); w.e(f'v_add_u32 {v(vW3k)}, {v(vW3k)}, {v(vC)}')
    w.e(f'v_mul_u32_u24 {v(vW35)}, 3584, {v(vA)}'); w.e(f'v_add_u32 {v(vW35)}, {v(vW35)}, {v(vC)}')
    srd(w, R_QKV, P_WQKV, 1536 * KB); srd(w, R_W2, P_W2, 512 * KB); srd(w, R_W3, P_W3, 1792 * KB)
    srd(w, R_WO, P_WO, 512 * KB); srd(w, R_W4, P_W4, 1792 * KB); srd(w, R_WS, P_WS, WS_END)
    p4_ids(w); w.e(f's_lshl_b32 {s(sCol3)}, {s(sJ)}, 8')
    w.e(f'v_lshl_add_u32 {v(vLin)}, v0, 4, {s(sM0)}')
    w.e(f'v_lshrrev_b32 {v(vKlo)}, 5, v0'); w.e(f'v_lshlrev_b32 {v(vKlo)}, 9, {v(vKlo)}'); w.e(f'v_mov_b32 {v(vVlo)}, 0x40000000')
    w.e(f's_cmp_eq_u32 {s(sX)}, 0'); w.e('s_cselect_b64 vcc, -1, 0'); w.e(f's_cselect_b32 {s(sStep)}, 0, 2048'); w.e(f's_cselect_b32 {s(sT)}, 0, 8192')
    w.e(f'v_cndmask_b32 {v(vKlo)}, {v(vLin)}, {v(vKlo)}, vcc'); w.e(f'v_cndmask_b32 {v(vVlo)}, {v(vLin)}, {v(vVlo)}, vcc')
    w.e(f's_lshl_b32 {s(sKhi)}, {s(sIDX)}, 16'); w.e(f's_lshl_b32 {s(sKlo)}, {s(sX)}, 13'); w.e(f's_add_u32 {s(sKhi)}, {s(sKhi)}, {s(sKlo)}')
    w.e(f's_sub_u32 {s(sKlo)}, {s(sKhi)}, {s(sT)}')
    w.e(f's_lshr_b32 s94, {s(sIDX)}, 1'); w.e(f's_lshl_b32 s95, {s(sX)}, 4'); w.e('s_add_u32 s94, s94, s95'); w.e('s_lshl_b32 s94, s94, 7')
    pq = Poll(P_WS, ['s94'], 8, 96, 98)
    def fill_kv(tag, slot, wsoff, vlo):
        w.e(f's_mov_b32 {s(sT)}, {s(sKlo)}')
        for n in range(4):
            dma(vlo, R_WS, sT, wsoff, SL(slot) + n * 2048, tag, ' sc1')
            if n < 3: w.e(f's_add_u32 {s(sT)}, {s(sT)}, {s(sStep)}')
        for n in range(4): dma(vLin, R_WS, sKhi, wsoff + n * 2048, SL(slot) + 8192 + n * 2048, tag, ' sc1')
    def kvq():
        pq.check(w)
        for n in range(4): dma(vLin, R_WS, sKhi, WS_Q + n * 2048, SL(S_Q) + n * 2048, 'kq', ' sc1')
        fill_kv('kq', S_K, WS_K, vKlo); fill_kv('vv', S_V, WS_V, vVlo)
    w3 = lambda p, i: (lambda: fill_w(f'w3{p}{i}', (S_W3A, S_W3B)[p][i], vW35, R_W3, sCol3, 128 * p, 3584, lambda n: 128 * i + 16 * n))
    wo = lambda i: (lambda: fill_w(f'wo{i}', S_WO[i], vW1k, R_WO, sCol, 0, 1024, lambda n: 128 * i + 16 * n))
    w4 = lambda i: (lambda: fill_w(f'w4{i}', S_W4[i], vW1k, R_W4, sCol, 0, 1024,
                                   lambda n: 128 * (2 * (i % 7) + (n >> 2)) + 64 * (i // 7) + 16 * (n & 3)))
    after = {b: [] for b in BARS}; land = {b: [] for b in BARS}
    nxt = 4
    for t in range(24):
        land[f'B{t}'].append(f'f{t}')
        k = 2 if t in (6, 7) else 1
        for _ in range(k):
            if nxt < 24: after[f'B{t}'].append((lambda t_: (lambda: fill(t_)))(nxt)); nxt += 1
    after['B23'].append(lambda: pq.issue(w))
    after['BX'].append(kvq); land['BKV'].append('kq'); land['BP2'].append('vv')
    after['BKV'] += [w3(0, 0), w3(0, 1)]; after['BP2'] += [w3(0, 2), w3(0, 3)]; land['BA'].append('w303')
    after['BA'] += [w3(1, 0), w3(1, 1), w3(1, 2)]; after['BT1'] += [w3(1, 3)]
    for i in range(4): land[f'BW{i}'].append(f'w31{i}')
    after['BW1'] += [wo(0)]; after['BW2'] += [wo(1)]; after['BW3'] += [wo(2)]; after['BT3'] += [wo(3)]; after['BT3b'] += [w4(0)]
    for i in range(4): land[f'BO{i}'].append(f'wo{i}')
    after['BE4'] += [w4(1), w4(2)]; after['BO1'] += [w4(3)]; after['BO3'] += [w4(4)]
    for i in range(14):
        land[f'BF{i}'].append(f'w4{i}')
        if i + 5 < 14: after[f'BF{i}'].append(w4(i + 5))
    for b in BARS:
        for tg in land[b]: w.wait_vm_tag(tg)
        w.bar(b)
        for f in after[b]: f()
    w.e('s_endpgm')
    return w

def role_sync(pro):
    w = fork(pro, 'sync', 'Lsync')
    srd(w, R_WS, P_WS, WS_END)
    sk = lab('nz')
    sOne = 60
    w.e(f's_mov_b32 {s(sOne)}, 1')
    w.e('s_cmp_ge_u32 s2, 4'); w.e(f's_cbranch_scc1 {sk}')
    w.e('v_lshlrev_b32 v1, 4, v0')
    for i in range(4): w.e(f'v_mov_b32 {v(4+i)}, 0')
    w.e('s_lshl_b32 s7, s2, 13'); w.e('s_add_u32 s6, s7, 4096')
    for i in range(8): w.e(f'buffer_store_dwordx4 v[4:7], v1, {s(R_WS,4)}, {"s6" if i >= 4 else "s7"} offen offset:{(i & 3) * 1024} sc1')
    w.waitcnt(vm=0)
    w.e(f's_atomic_add {s(sOne)}, {s(P_DBG,2)}, 0')
    w.label(sk)
    p4_ids(w)
    oH, oHm, oHp, oO, oO0, oMB = 42, 43, 44, 45, 46, 50
    bQ0, bQ1, bX, bH3, sR2 = 54, 56, 58, 62, 61
    w.e(f's_lshl_b32 {s(oH)}, {s(sR64)}, 7'); w.e(f's_add_u32 {s(oO)}, {s(oH)}, {CNT_O}')
    w.e(f's_sub_u32 {s(oHm)}, {s(oH)}, 128'); w.e(f's_and_b32 {s(oHm)}, {s(oHm)}, 0xf80'); w.e(f's_add_u32 {s(oHm)}, {s(oHm)}, {CNT_H}')
    w.e(f's_add_u32 {s(oHp)}, {s(oH)}, 128'); w.e(f's_and_b32 {s(oHp)}, {s(oHp)}, 0xf80'); w.e(f's_add_u32 {s(oHp)}, {s(oHp)}, {CNT_H}')
    w.e(f's_add_u32 {s(oH)}, {s(oH)}, {CNT_H}')
    w.e(f's_lshl_b32 {s(oO0)}, {s(sX)}, 9'); w.e(f's_add_u32 {s(oO0)}, {s(oO0)}, {CNT_O}')
    for i in range(1, 4): w.e(f's_add_u32 {s(oO0+i)}, {s(oO0)}, {128*i}')
    w.e(f's_lshr_b32 s6, {s(sIDX)}, 1'); w.e(f's_lshl_b32 s7, {s(sX)}, 4'); w.e('s_add_u32 s6, s6, s7'); w.e('s_lshl_b32 s6, s6, 7')
    for i in range(3): w.e(f's_add_u32 {s(oMB+i)}, s6, {4+4*i}')
    def base(dst):
        w.e('s_lshl_b32 s6, s6, 7'); w.e(f's_add_u32 {s(dst)}, {s(P_WS)}, s6'); w.e(f's_addc_u32 {s(dst+1)}, {s(P_WS+1)}, 0')
    w.e(f's_lshl_b32 s39, {s(sCS)}, 1'); w.e('s_add_u32 s6, s7, s39'); base(bQ0)
    w.e('s_add_u32 s6, s7, 16'); w.e('s_and_b32 s6, s6, 0x70'); w.e('s_add_u32 s6, s6, s39'); base(bQ1)
    w.e(f's_lshr_b32 {s(sR2)}, {s(sIDX)}, 4'); w.e(f's_mul_i32 s6, {s(sR2)}, 7'); w.e('s_add_u32 s6, s6, s7'); base(bX)
    w.e(f's_lshl_b32 s6, {s(sRB128)}, 3'); base(bH3)
    P = lambda base, offs, tgt, c=False: Poll(base, offs, tgt, 64, 68, c)
    pI = P(P_DBG, ['0'], 4, True); pH = P(P_WS, [s(oH), s(oHm), s(oHp)], 8, True); pX = P(P_WS, [s(oMB)], 16)
    pO = P(P_WS, [s(oO0 + i) for i in range(4)], 8, True); pA = P(P_WS, [s(oMB + 1)], 14); pB = P(P_WS, [s(oMB + 2)], 14)
    sig = lambda off, val=sOne: (lambda: w.e(f's_atomic_add {s(val)}, {s(P_WS,2)}, {s(off)}'))
    def mail(b, n, dw, val=sOne, n0=0):
        def f():
            for i in range(n0, n0 + n): w.e(f's_atomic_add {s(val)}, {s(b,2)}, {128*i + 4*dw}')
        return f
    after = {b: [] for b in BARS}; before = {b: [] for b in BARS}
    def poll(p, a, b): after[a].append(lambda: p.issue(w)); before[b].append(lambda: p.check(w))
    poll(pI, f'B{HP-3}', f'B{HP}'); after[f'B{HP}'].append(sig(oH))
    poll(pH, 'B17', 'B19'); after['B21'] += [mail(bQ0, 2, 0), mail(bQ1, 2, 0)]
    after['BP2'] += [mail(bX, 7, 1), mail(bX, 2, 1, sR2, 7)]; poll(pX, 'BP2', 'BX1')
    after['BT1'].append(sig(oO)); poll(pO, 'BW3', 'BT3')
    after['BT3b'].append(mail(bH3, 8, 2, sV4)); poll(pA, 'BO0', 'BO1')
    after['BO3'].append(mail(bH3, 8, 3, sV4)); poll(pB, f'BF{6-LA6}', f'BF{7-LA6}')
    for b in BARS:
        for f in before[b]: f()
        w.bar(b)
        for f in after[b]: f()
    w.e('s_endpgm')
    return w

def role_misc(pro):
    w = fork(pro, 'misc', 'Lmisc')
    R_T, R_X, R_G, R_W3, R_W4 = 40, 44, 48, 52, 56
    XG, GG, WG_, ACC = 16, 48, 80, 112
    stamps, pending, hold = [], [], [0]
    vS = 200
    def stamp(name, real=None):
        if not DIAG: return
        r = 76 + 2 * len(pending)
        if real is None:
            w.e(f's_memtime {s(r,2)}'); lane = 2 + len(stamps); stamps.append(name)
        else:
            w.e(f's_memrealtime {s(r,2)}'); lane = real
        pending.append((r, lane))
        if hold[0] > 0: hold[0] -= 1; return
        for r, lane in pending: w.e(f'v_writelane_b32 {v(vS)}, {s(r)}, {lane}')
        pending.clear()
    hold[0] = 2; stamp('', 0); stamp('start')
    w.e('v_lshlrev_b32 v1, 7, v0')
    w.e('v_lshrrev_b32 v2, 3, v0'); w.e('v_and_b32 v3, 7, v0'); w.e('v_lshlrev_b32 v3, 4, v3')
    w.e('v_lshl_add_u32 v4, v2, 10, v3'); w.e('v_mul_u32_u24 v5, 3584, v2'); w.e('v_add_u32 v5, v5, v3')
    w.e('s_cmp_lt_u32 s2, 64'); w.e(f's_cselect_b32 {s(R_T)}, {s(P_W1)}, {s(P_WQKV)}'); w.e(f's_cselect_b32 {s(R_T+1)}, {s(P_W1+1)}, {s(P_WQKV+1)}')
    w.e(f's_cselect_b32 s6, 0, 64'); w.e(f's_mov_b32 s7, {1536*KB}'); w.e(f's_cselect_b32 {s(R_T+2)}, {512*KB}, s7')
    w.e(f's_and_b32 {s(R_T+1)}, {s(R_T+1)}, 0xffff'); w.e(f's_mov_b32 {s(R_T+3)}, 0x20000')
    w.e('s_sub_u32 s6, s2, s6'); w.e('s_lshl_b32 s6, s6, 13')
    if OPT['touch']: w.e(f'buffer_load_dword v254, v1, {s(R_T,4)}, s6 offen')
    srd(w, R_X, P_X, 2 * MB); srd(w, R_G, P_GW, 1024)
    w.e(f's_lshl_b32 s6, {s(sR64)}, 3'); w.e(f's_add_u32 s60, s6, {s(sCS)}'); w.e('s_lshl_b32 s6, s60, 13')
    for i in range(8): w.e(f'buffer_load_dwordx4 {v(XG+4*i,4)}, v4, {s(R_X,4)}, s6 offen offset:{128*i}')
    for i in range(8): w.e(f'buffer_load_dwordx4 {v(GG+4*i,4)}, v3, {s(R_G,4)}, 0 offen offset:{128*i}')
    srd(w, R_W3, P_W3, 1792 * KB); srd(w, R_W4, P_W4, 1792 * KB); srd(w, R_WS, P_WS, WS_END)
    p4_ids(w)
    w.e('s_mul_i32 s61, s2, 2341'); w.e('s_lshr_b32 s61, s61, 16'); w.e('s_mul_i32 s6, s61, 28'); w.e('s_sub_u32 s62, s2, s6')
    after = {b: [] for b in BARS}; before = {b: [] for b in BARS}
    def late_loads():
        w.e(f's_mul_i32 s6, s61, {64*3584}'); w.e('s_lshl_b32 s7, s62, 7'); w.e('s_add_u32 s6, s6, s7')
        for i in range(8):
            w.e(f'buffer_load_dwordx4 {v(WG_+4*i,4)}, v5, {s(R_W3,4)}, s6 offen')
            if i < 7: w.e(f's_add_u32 s6, s6, {8*3584}')
        w.e('s_cmp_lt_u32 s2, 64'); w.e(f's_cselect_b32 {s(R_T)}, {s(P_W2)}, {s(P_WO)}'); w.e(f's_cselect_b32 {s(R_T+1)}, {s(P_W2+1)}, {s(P_WO+1)}'); w.e('s_cselect_b32 s6, 0, 64')
        w.e('s_cmp_lt_u32 s2, 128'); w.e(f's_cselect_b32 {s(R_T)}, {s(R_T)}, {s(P_W4)}'); w.e(f's_cselect_b32 {s(R_T+1)}, {s(R_T+1)}, {s(P_W4+1)}'); w.e('s_cselect_b32 s6, s6, 128')
        w.e(f's_mov_b32 s7, {1792*KB}'); w.e(f's_cselect_b32 {s(R_T+2)}, {512*KB}, s7'); w.e(f's_and_b32 {s(R_T+1)}, {s(R_T+1)}, 0xffff')
        w.e('s_sub_u32 s6, s2, s6'); w.e('s_lshl_b32 s6, s6, 13')
        if OPT['touch']: w.e(f'buffer_load_dword v253, v1, {s(R_T,4)}, s6 offen')
        w.e('s_add_u32 s6, s2, 128'); w.e('s_lshl_b32 s6, s6, 13')
        if OPT['touch']: w.e(f'buffer_load_dword v252, v1, {s(R_W4,4)}, s6 offen')
    def gate():
        w.e('v_mov_b32 v6, 0'); w.e('v_mov_b32 v7, 0')
        for i in range(32): w.e(f'v_dot2c_f32_bf16 {v(6 + (i & 1))}, {v(XG+i)}, {v(GG+i)}')
        w.e('v_add_f32 v6, v6, v7')
        for m in ('quad_perm:[1,0,3,2]', 'quad_perm:[2,3,0,1]', 'row_half_mirror'):
            w.e(f'v_add_f32_dpp v6, v6, v6 {m} row_mask:0xf bank_mask:0xf')
        w.e(f'v_mul_f32 v6, {fl(-LOG2E)}, v6'); w.e('v_exp_f32 v6, v6'); w.e('v_add_f32 v6, 1.0, v6'); w.e('v_rcp_f32 v6, v6')
        w.e('v_lshlrev_b32 v7, 2, v2'); w.e('s_lshl_b32 s6, s60, 5'); w.e(f's_add_u32 s6, s6, {WS_G}')
        w.e('s_mov_b32 s7, 0x01010101'); w.e('s_mov_b32 exec_lo, s7'); w.e('s_mov_b32 exec_hi, s7')
        w.e(f'buffer_store_dword v6, v7, {s(R_WS,4)}, s6 offen sc1')
        w.e('s_mov_b64 exec, -1')
    def csum(i):
        def f():
            for d in range(4):
                src = WG_ + 4 * i + d
                if i == 0:
                    w.e(f'v_lshlrev_b32 {v(ACC+2*d)}, 16, {v(src)}'); w.e(f'v_and_b32 {v(ACC+2*d+1)}, 0xffff0000, {v(src)}')
                else:
                    w.e(f'v_lshlrev_b32 v8, 16, {v(src)}'); w.e(f'v_and_b32 v9, 0xffff0000, {v(src)}')
                    w.e(f'v_add_f32 {v(ACC+2*d)}, {v(ACC+2*d)}, v8'); w.e(f'v_add_f32 {v(ACC+2*d+1)}, {v(ACC+2*d+1)}, v9')
        return f
    def csum_fin():
        for c in range(8): w.e(f'v_add_f32_dpp {v(ACC+c)}, {v(ACC+c)}, {v(ACC+c)} row_ror:8 row_mask:0xf bank_mask:0xf')
        for op in ('v_permlane16_swap_b32', 'v_permlane32_swap_b32'):
            for c in range(8): w.e(f'v_mov_b32 {v(ACC+8+c)}, {v(ACC+c)}')
            for c in range(8): w.e(f'{op} {v(ACC+c)}, {v(ACC+8+c)}')
            for c in range(8): w.e(f'v_add_f32 {v(ACC+c)}, {v(ACC+c)}, {v(ACC+8+c)}')
        w.e('v_lshlrev_b32 v7, 5, v0'); w.e('s_mul_i32 s6, s61, 7168'); w.e('s_lshl_b32 s7, s62, 8'); w.e('s_add_u32 s6, s6, s7'); w.e(f's_add_u32 s6, s6, {WS_CSP}')
        w.e('s_cmp_lt_u32 s2, 224'); w.e('s_cselect_b32 s63, 1, 0'); w.e(f's_cselect_b32 s6, s6, {0x40000000}')
        w.e('s_mov_b64 exec, 0xff')
        w.e(f'buffer_store_dwordx4 {v(ACC,4)}, v7, {s(R_WS,4)}, s6 offen sc1'); w.e(f'buffer_store_dwordx4 {v(ACC+4,4)}, v7, {s(R_WS,4)}, s6 offen offset:16 sc1')
        w.e('s_mov_b64 exec, -1')
    def csig():
        w.e('s_lshr_b32 s6, s62, 1'); w.e('s_lshl_b32 s6, s6, 7'); w.e(f's_add_u32 s6, s6, {CNT_CS}')
        w.e(f's_atomic_add s63, {s(P_WS,2)}, s6'); hold[0] = 3
    def ones():
        w.e('v_lshrrev_b32 v7, 4, v0'); w.e('v_lshlrev_b32 v7, 9, v7'); w.e('v_and_b32 v8, 15, v0'); w.e('v_lshl_add_u32 v7, v8, 4, v7'); w.e(f'v_add_u32 v7, {SL(S_ONE)}, v7')
        w.e(f's_cmp_eq_u32 {s(sX)}, 0'); w.e('s_cselect_b32 s6, 0, 0x3f803f80')
        for i in range(4): w.e(f'v_mov_b32 {v(8+i)}, s6'); w.e(f'v_mov_b32 {v(12+i)}, 0x3f803f80')
        for i in range(8): w.e(f'ds_write_b128 v7, {v(8 if i < 4 else 12, 4)} offset:{2048*i}')
        w.waitcnt(lg=0)
    pc = Poll(P_WS, ['s64'], 16, 66, 68, True)
    def cs_issue():
        w.e(f's_lshl_b32 s64, {s(sJ)}, 7'); w.e(f's_add_u32 s64, s64, {CNT_CS}'); pc.issue(w); hold[0] = 1
    def cs_load():
        pc.check(w)
        w.e('v_lshlrev_b32 v7, 3, v0'); w.e(f's_lshl_b32 s6, {s(sJ)}, 9'); w.e(f's_add_u32 s6, s6, {WS_CSP}')
        for i in range(8):
            w.e(f'buffer_load_dwordx2 {v(16+2*i,2)}, v7, {s(R_WS,4)}, s6 offen sc1')
            if i < 7: w.e('s_add_u32 s6, s6, 7168')
    def cs_write(addr):
        def f():
            if addr == CSA:
                for i in range(1, 8):
                    w.e(f'v_add_f32 v16, v16, {v(16+2*i)}'); w.e(f'v_add_f32 v17, v17, {v(17+2*i)}')
            w.e(f'v_add_u32 v8, {addr}, v7'); w.e('ds_write_b64 v8, v[16:17]'); w.waitcnt(lg=0)
        return f
    after['B0'].append(gate); after['B1'].append(late_loads)
    for i in range(8): after[f'B{5 + i // 3}'].append(csum(i))
    after['B8'].append(csum_fin)
    before[f'B{HP}'].append(lambda: w.waitcnt(vm=0)); after[f'B{HP}'].append(csig)
    after['B20'].append(ones)
    after['BKV'].append(cs_issue); after['BP2'].append(cs_load); after['BX1'].append(cs_write(CSA)); after['BW1'].append(cs_write(CSB))
    for b in BARS:
        for f in before[b]: f()
        w.bar(b); stamp(b)
        for f in after[b]: f()
    if DIAG:
        w.bar('BEND'); stamp('end'); stamp('', 1)
        w.e('v_lshlrev_b32 v1, 2, v0'); w.e('s_lshl_b32 s6, s2, 9'); w.e(f's_add_u32 s6, s6, {WS_DIAG}')
        w.e(f'buffer_store_dword {v(vS)}, v1, {s(R_WS,4)}, s6 offen')
    w.e('s_endpgm')
    w.stamps = stamps
    return w

class Filler:
    def __init__(self): self.q = []
    def add(self, text, cost=4, tag=None): self.q.append((text, cost, tag))
    def call(self, f): self.q.append((f, 0, None))
    def pull(self, w, budget):
        while self.q and budget > 0:
            t, c, tag = self.q.pop(0)
            if callable(t): t()
            else: w.e(t, tag)
            budget -= c
    def flush(self, w): self.pull(w, 1 << 30)

def run_steps(w, steps, L, fill=None, budget=16):
    for i in range(min(L, len(steps))): steps[i]['rd']()
    for n, st in enumerate(steps):
        st['mm']()
        if n + L < len(steps): steps[n + L]['rd']()
        if 'post' in st: st['post']()
        if fill: fill.pull(w, budget)

def role_comp(pro):
    w = fork(pro, 'comp', 'Lcomp')
    R_OUT, R_H3 = 76, 80
    MK = 40
    sRH, sC2, sRB, sA, sB, sHV, sM1, sM2, sO1, sO2 = 84, 85, 86, 87, 88, 90, 92, 94, 96, 97
    vL16 = 1; WA = [2, 3, 4]; WB = [5, 6, 7]; XR = 16; MD = 24
    ACC0, ACC1, CS, SQ, SM, ONE, XA, WR, PK, vHo, vVo, vXr, vCom, vH = 32, 48, 64, 80, 84, 88, 92, 96, 116, 124, 125, 126, 14, 15
    X = lambda f: 128 + 4 * f
    MF = 'v_mfma_f32_32x32x16_bf16'; M4 = 'v_mfma_f32_4x4x4_16b_bf16'
    def tr(dst, bases, addr, second):
        for i, a in enumerate((addr, addr + second)):
            w.e(f'ds_read_b64_tr_b16 {v(dst+2*i,2)}, {v(bases[a >> 16])} offset:{a & 0xffff}')
    def windows(b):
        w.e(f'v_add_u32 {v(b[1])}, 0x10000, {v(b[0])}'); w.e(f'v_add_u32 {v(b[2])}, 0x20000, {v(b[0])}')
    w.e(f's_and_b32 {s(sRH)}, s3, 1'); w.e(f's_lshr_b32 {s(sC2)}, s3, 1')
    w.e(f's_lshl_b32 {s(sRB)}, {s(sR64)}, 1'); w.e(f's_add_u32 {s(sRB)}, {s(sRB)}, {s(sRH)}')
    w.e(f'v_lshlrev_b32 {v(vL16)}, 4, v0'); w.e(f'v_lshrrev_b32 {v(vH)}, 5, v0'); w.e('v_and_b32 v8, 31, v0')
    w.e('v_bfe_u32 v9, v0, 2, 2'); w.e('v_and_b32 v10, 3, v0'); w.e('v_bfe_u32 v11, v0, 4, 1'); w.e('v_bfe_u32 v12, v0, 3, 1')
    w.e(f'v_lshlrev_b32 {v(vCom)}, 7, v9'); w.e(f'v_lshl_add_u32 {v(vCom)}, v10, 3, {v(vCom)}'); w.e(f'v_lshl_add_u32 {v(vCom)}, v11, 5, {v(vCom)}'); w.e(f'v_lshl_add_u32 {v(vCom)}, v12, 6, {v(vCom)}')
    w.e(f's_lshl_b32 {s(sA)}, {s(sC2)}, 6'); w.e(f'v_xor_b32 {v(WA[0])}, {s(sA)}, {v(vCom)}'); w.e(f'v_lshl_add_u32 {v(WA[0])}, {v(vH)}, 10, {v(WA[0])}'); windows(WA)
    w.e(f's_lshl_b32 {s(sA)}, {s(sRH)}, 5'); w.e(f'v_add_u32 v9, {s(sA)}, v8'); w.e('v_lshlrev_b32 v9, 7, v9'); w.e('v_bfe_u32 v10, v0, 1, 3')
    w.e(f'v_xor_b32 v12, v10, {v(vH)}'); w.e(f'v_lshl_add_u32 {v(XA)}, v12, 4, v9')
    for k in range(1, 4): w.e(f'v_xor_b32 {v(XA+k)}, {32*k}, {v(XA)}')
    w.e(f's_lshl_b32 {s(sA)}, {s(sC2)}, 2'); w.e(f'v_xor_b32 v12, {s(sA)}, v10'); w.e(f'v_lshl_add_u32 {v(vXr)}, v12, 4, v9'); w.e(f'v_lshl_add_u32 {v(vXr)}, {v(vH)}, 3, {v(vXr)}')
    w.e(f's_lshl_b32 {s(sA)}, {s(sCS)}, 14'); w.e(f'v_add_u32 {v(vXr)}, {s(sA)}, {v(vXr)}')
    for i in range(4): w.e(f'v_mov_b32 {v(ONE+i)}, 0x3f803f80')
    w.e(f's_lshr_b32 {s(sA)}, {s(sCS)}, 2'); w.e(f's_add_u32 {s(sA)}, {s(sA)}, 1'); w.e(f's_sub_u32 {s(sB)}, 0, {s(sA)}')
    w.e(f's_bitcmp1_b32 {s(sCS)}, 1'); w.e(f's_cselect_b32 {s(sA)}, {s(sB)}, {s(sA)}')
    w.e(f's_lshl_b32 {s(sB)}, {s(sRB)}, 5'); w.e(f's_add_u32 {s(sA)}, {s(sA)}, {s(sB)}'); w.e(f'v_add_u32 v9, {s(sA)}, v8')
    w.e(f's_movk_i32 {s(sA)}, 2048'); w.e(f'v_cmp_gt_u32 {s(sHV,2)}, {s(sA)}, v9')
    w.e('v_bfe_u32 v10, v9, 5, 6'); w.e('v_and_b32 v9, 31, v9'); w.e(f'v_lshlrev_b32 {v(vHo)}, 15, v10'); w.e(f'v_lshl_add_u32 {v(vHo)}, v9, 4, {v(vHo)}'); w.e(f'v_lshl_add_u32 {v(vHo)}, {v(vH)}, 9, {v(vHo)}')
    w.e('v_and_b32 v9, 15, v0'); w.e(f'v_lshlrev_b32 {v(vVo)}, 16, v11'); w.e(f'v_lshl_add_u32 {v(vVo)}, v9, 4, {v(vVo)}'); w.e(f'v_lshl_add_u32 {v(vVo)}, {v(vH)}, 8, {v(vVo)}')
    w.e('v_and_b32 v9, 1, v0'); w.e(f'v_cmp_ne_u32 {s(sM1,2)}, 0, v9'); w.e('v_and_b32 v9, 2, v0'); w.e(f'v_cmp_ne_u32 {s(sM2,2)}, 0, v9')
    w.e(f'v_lshlrev_b32 v9, 2, {v(vH)}'); w.e('v_sub_u32 v9, v8, v9')
    for r in range(16): w.e(f'v_cmp_le_i32 {s(MK+2*r,2)}, {8*(r>>2)+(r&3)}, v9')
    w.e('v_mov_b32 v9, 0xffff'); w.e('v_mov_b32 v10, 0xffff0000')
    for p in range(8):
        w.e(f'v_cndmask_b32 {v(MD+p)}, 0, v9, {s(MK+4*p,2)}'); w.e(f'v_cndmask_b32 v12, 0, v10, {s(MK+4*p+2,2)}'); w.e(f'v_or_b32 {v(MD+p)}, {v(MD+p)}, v12')
    srd(w, R_WS, P_WS, WS_END); srd(w, R_OUT, P_OUT, 2 * MB); srd(w, R_H3, P_WS, WS_END)
    p4_ids(w); w.e(f's_mul_i32 {s(R_H3+2)}, {s(sV4)}, {WS_END}')
    sT2 = 89
    w.e(f's_lshl_b32 {s(sT2)}, {s(sCS)}, 1'); w.e(f's_add_u32 {s(sT2)}, {s(sT2)}, {s(sC2)}'); w.e(f's_lshl_b32 {s(sT2)}, {s(sT2)}, 1')

    def ln_consts(vs, vq, K):
        w.e(f'v_permlane32_swap_b32 {v(vs)}, {v(vq)}'); w.e(f'v_add_f32 {v(vs)}, {v(vs)}, {v(vq)}'); w.e(f'v_mov_b32 {v(vq)}, {v(vs)}')
        w.e(f'v_permlane32_swap_b32 {v(vs)}, {v(vq)}')
        w.e(f'v_mul_f32 {v(K)}, {fl(-1/512)}, {v(vs)}'); w.e(f'v_mul_f32 {v(vq)}, {fl(1/512)}, {v(vq)}')
        w.e(f'v_fma_f32 {v(vq)}, -{v(K)}, {v(K)}, {v(vq)}'); w.e(f'v_max_f32 {v(vq)}, 0, {v(vq)}'); w.e(f'v_add_f32 {v(vq)}, {fl(1e-5)}, {v(vq)}')
        w.e(f'v_rsq_f32 {v(vs)}, {v(vq)}')
        w.e(f'v_mul_f32 {v(K+1)}, {v(vq)}, {v(vs)}'); w.e(f'v_mul_f32 {v(K+2)}, {fl(C0)}, {v(vs)}'); w.e(f'v_mul_f32 {v(vq)}, {v(vs)}, {v(vs)}')
        w.e(f'v_mul_f32 {v(vq)}, {v(vq)}, {v(vs)}'); w.e(f'v_mul_f32 {v(K+3)}, {fl(C1)}, {v(vq)}')
    def gelu_packed(acc, cs, K, pk):
        P2 = lambda r: v(r, 2)
        for p in range(8): w.e(f'v_pk_fma_f32 {P2(acc+2*p)}, {P2(cs+2*p)}, {P2(K)}, {P2(acc+2*p)} op_sel_hi:[1,0,1]')
        for p in range(8): w.e(f'v_pk_mul_f32 {P2(cs+2*p)}, {P2(acc+2*p)}, {P2(acc+2*p)}')
        for p in range(8): w.e(f'v_pk_fma_f32 {P2(cs+2*p)}, {P2(cs+2*p)}, {P2(K+2)}, {P2(K+2)} op_sel:[0,1,0] op_sel_hi:[1,1,0]')
        for p in range(8): w.e(f'v_pk_mul_f32 {P2(cs+2*p)}, {P2(cs+2*p)}, {P2(acc+2*p)}')
        for r in range(16): w.e(f'v_exp_f32 {v(cs+r)}, {v(cs+r)}')
        for p in range(8): w.e(f'v_pk_fma_f32 {P2(cs+2*p)}, {P2(cs+2*p)}, {P2(K)}, {P2(K)} op_sel:[0,1,1] op_sel_hi:[1,1,1]')
        for r in range(16): w.e(f'v_rcp_f32 {v(cs+r)}, {v(cs+r)}')
        for p in range(8): w.e(f'v_pk_mul_f32 {P2(acc+2*p)}, {P2(acc+2*p)}, {P2(cs+2*p)}')
        for p in range(8): w.e(f'v_cvt_pk_bf16_f32 {v(pk+p)}, {v(acc+2*p)}, {v(acc+2*p+1)}')

    L = 3
    steps = []
    for n in range(32):
        c, ks = n >> 2, n & 3
        def rd(n=n, c=c, ks=ks):
            if ks == 0:
                w.bar(f'B{c}')
                if c == 4:
                    for k in range(4): w.e(f'v_add_u32 {v(XA+k)}, 0x10000, {v(XA+k)}')
                sk = lab('xr')
                w.e(f's_cmp_lg_u32 {s(sCS)}, {c}'); w.e(f's_cbranch_scc1 {sk}')
                for j in range(4):
                    w._push(Ins(f'ds_read_b64 {v(XR+2*j,2)}, {v(vXr)}'))
                    if j < 3: w._push(Ins(f'v_xor_b32 {v(vXr)}, {16*(j ^ (j+1))}, {v(vXr)}'))
                w._push(Ins('s_waitcnt lgkmcnt(0)'))
                w.label(sk)
            w.e(f'ds_read_b128 {v(X(n),4)}, {v(XA+ks)} offset:{SL(c & 3)}')
            tr(WR + 4 * (n % L), WA, SL(c) + 8192 + ks * 2048, 512)
        def mm(n=n):
            z = lambda r, k: '0' if n == 0 else v(r, k)
            wr = v(WR + 4 * (n % L), 4)
            w.e(f'{M4} {v(SQ,4)}, {v(X(n),2)}, {v(X(n),2)}, {z(SQ,4)}'); w.e(f'{M4} {v(SM,4)}, {v(ONE,2)}, {v(X(n),2)}, {z(SM,4)}')
            w.e(f'{MF} {v(ACC0,16)}, {wr}, {v(X(n),4)}, {z(ACC0,16)}')
            w.e(f'{M4} {v(SQ,4)}, {v(X(n)+2,2)}, {v(X(n)+2,2)}, {v(SQ,4)}'); w.e(f'{M4} {v(SM,4)}, {v(ONE,2)}, {v(X(n)+2,2)}, {v(SM,4)}')
            w.e(f'{MF} {v(CS,16)}, {wr}, {v(ONE,4)}, {z(CS,16)}')
        steps.append(dict(rd=rd, mm=mm))
    run_steps(w, steps, L)
    w.e(f'v_cndmask_b32 v12, {v(SQ)}, {v(SQ+1)}, {s(sM1,2)}'); w.e(f'v_cndmask_b32 v13, {v(SQ+2)}, {v(SQ+3)}, {s(sM1,2)}'); w.e(f'v_cndmask_b32 v13, v12, v13, {s(sM2,2)}')
    w.e(f'v_mov_b32 v12, {v(SM)}')
    ln_consts(12, 13, 8)
    gelu_packed(ACC0, CS, 8, PK)
    for p in range(8): w.e(f'v_cndmask_b32 {v(PK+p)}, 0, {v(PK+p)}, {s(sHV,2)}')
    w.e(f's_lshl_b32 {s(sA)}, {s(sT2)}, 10'); w.e(f's_add_u32 {s(sA)}, {s(sA)}, {WS_HS}')
    for u in range(2): w.e(f'buffer_store_dwordx4 {v(PK+4*u,4)}, {v(vHo)}, {s(R_WS,4)}, {s(sA)} offen offset:{1024*u} sc1', 'hst')

    L = 5
    fill = Filler()
    w.e(f's_lshl_b32 {s(sO1)}, {s(sT2)}, 16'); w.e(f's_lshl_b32 {s(sA)}, {s(sRB)}, 10'); w.e(f's_add_u32 {s(sO1)}, {s(sO1)}, {s(sA)}')
    def qkv_epi(i, F):
        acc = (ACC1, ACC0, ACC1)[i]
        if i == 0:
            for r in range(16): F.add(f'v_mul_f32 {v(acc+r)}, {fl(0.25*LOG2E)}, {v(acc+r)}')
        for p in range(8): F.add(f'v_cvt_pk_bf16_f32 {v(PK+p)}, {v(acc+2*p)}, {v(acc+2*p+1)}')
        base = (WS_Q, WS_K, WS_V)[i]
        F.add(f's_add_u32 {s(sA)}, {s(sO1)}, {base}')
        if i < 2:
            F.add(f's_add_u32 {s(sB)}, {s(sO1)}, {base + 65536}')
            F.add(f'buffer_store_dwordx4 {v(PK,4)}, {v(vL16)}, {s(R_WS,4)}, {s(sA)} offen sc1', 4, 'qkvst')
            F.add(f'buffer_store_dwordx4 {v(PK+4,4)}, {v(vL16)}, {s(R_WS,4)}, {s(sB)} offen sc1', 4, 'qkvst')
        else:
            for u in range(2): F.add(f'buffer_store_dwordx4 {v(PK+4*u,4)}, {v(vVo)}, {s(R_WS,4)}, {s(sA)} offen offset:{512*u} sc1', 4, 'qkvst')
    steps = []
    for n in range(96):
        i, f = n // 32, n % 32
        t = 8 + n // 8
        def rd(n=n, f=f, t=t):
            if f % 8 == 0:
                if t == HP: w.wait_vm_tag('hst')
                w.bar(f'B{t}')
            tr(WR + 4 * (n % L), WA, SL(t % 10) + (f % 8) * 2048, 512)
        def mm(n=n, i=i, f=f):
            acc = (ACC1, ACC0, ACC1)[i]; wr = v(WR + 4 * (n % L), 4); xf = v(X(f), 4)
            a, b = (wr, xf) if i < 2 else (xf, wr)
            w.e(f'{MF} {v(acc,16)}, {a}, {b}, {"0" if f == 0 else v(acc,16)}')
        st = dict(rd=rd, mm=mm)
        if f == 3 and i > 0: st['post'] = (lambda i=i: qkv_epi(i - 1, fill))
        steps.append(st)
    run_steps(w, steps, L, fill, 12)
    def splitk_bases():
        w.e(f's_lshl_b32 {s(sA)}, {s(sC2)}, 6'); w.e(f'v_xor_b32 {v(WA[0])}, {s(sA)}, {v(vCom)}'); w.e(f'v_lshl_add_u32 {v(WA[0])}, {v(vH)}, 9, {v(WA[0])}')
        w.e(f's_lshl_b32 {s(sA)}, {s(sC2)}, 13'); w.e(f'v_add_u32 {v(WA[0])}, {s(sA)}, {v(WA[0])}'); w.e(f'v_xor_b32 {v(WB[0])}, 64, {v(WA[0])}')
        windows(WA); windows(WB)
    splitk_bases()
    qkv_epi(2, fill); fill.flush(w)

    def act_base(dst, wsoff, rbmul):
        w.e(f's_mul_i32 {s(dst)}, {s(sRB)}, {rbmul}'); w.e(f's_add_u32 {s(dst)}, {s(dst)}, {wsoff}')
    def act_loads(F, base, slot_off, ring, tag=None):
        F.add(f's_add_u32 {s(sB)}, {s(base)}, {slot_off}')
        for i in range(4): F.add(f'buffer_load_dwordx4 {v(X(ring+i),4)}, {v(vL16)}, {s(R_WS,4)}, {s(sB)} offen offset:{1024*i} sc1', 4, tag)
    def splitk_steps(slots, bars, ring0, a0, a1, pre=None, first=True, n0=0):
        out = []
        for n in range(4 * len(slots)):
            sl, i = n >> 2, n & 3
            g = n0 + n
            def rd(sl=sl, i=i, g=g):
                if i == 0:
                    if pre: pre(sl)
                    w.bar(bars[sl])
                tr(WR + 8 * (g % 3), WA, SL(slots[sl]) + i * 2048, 1024); tr(WR + 8 * (g % 3) + 4, WB, SL(slots[sl]) + i * 2048, 1024)
            def mm(n=n, g=g):
                xf = v(X((ring0 + n) % 32), 4)
                w.e(f'{MF} {v(a0,16)}, {v(WR+8*(g%3),4)}, {xf}, {"0" if n == 0 else v(a0,16)}')
                w.e(f'{MF} {v(a1,16)}, {v(WR+8*(g%3)+4,4)}, {xf}, {"0" if n == 0 else v(a1,16)}')
            out.append(dict(rd=rd, mm=mm))
        return out
    act_base(sO2, WS_HS, 32768); w.e(f's_lshl_b32 {s(sA)}, {s(sC2)}, 12'); w.e(f's_add_u32 {s(sO2)}, {s(sO2)}, {s(sA)}')
    for sl in range(4): act_loads(fill, sO2, sl * 8192, 4 * sl)
    fill.flush(w)
    PK = 120
    steps = splitk_steps(S_W2, [f'B{20+i}' for i in range(4)], 0, ACC0, ACC1, pre=lambda sl: w.wait_vm_tag('qkvst') if sl == 1 else None)
    run_steps(w, steps, 3)
    def exchange(slot, src, dst, bar, between=None):
        w.e(f's_lshl_b32 {s(sA)}, s3, 12'); w.e(f's_add_u32 {s(sA)}, {s(sA)}, {SL(slot)}'); w.e(f'v_add_u32 v12, {s(sA)}, {v(vL16)}'); w.e('v_xor_b32 v13, 0x2000, v12')
        for q in range(4): w.e(f'ds_write_b128 v12, {v(src+4*q,4)} offset:{1024*q}')
        if between: between()
        w.waitcnt(lg=0); w.bar(bar)
        for q in range(4): w.e(f'ds_read_b128 {v(dst+4*q,4)}, v13 offset:{1024*q}')
    def add_x():
        for p in range(8):
            w.e(f'v_lshlrev_b32 {v(80+2*p)}, 16, {v(XR+p)}'); w.e(f'v_and_b32 {v(81+2*p)}, 0xffff0000, {v(XR+p)}')
        for p in range(8): w.e(f'v_pk_add_f32 {v(ACC0+2*p,2)}, {v(ACC0+2*p,2)}, {v(80+2*p,2)}')
    exchange(S_XCH, ACC1, CS, 'BX', add_x)
    act_base(sO2, WS_X1, 32768); w.e(f's_lshl_b32 {s(sA)}, {s(sT2)}, 10'); w.e(f's_add_u32 {s(sO2)}, {s(sO2)}, {s(sA)}')
    for p in range(8): w.e(f'v_pk_add_f32 {v(ACC0+2*p,2)}, {v(ACC0+2*p,2)}, {v(CS+2*p,2)}')
    for p in range(8): w.e(f'v_cvt_pk_bf16_f32 {v(XR+p)}, {v(ACC0+2*p)}, {v(ACC0+2*p+1)}')
    for u in range(2): w.e(f'buffer_store_dwordx4 {v(XR+4*u,4)}, {v(vL16)}, {s(R_WS,4)}, {s(sO2)} offen offset:{1024*u} sc1', 'x1st')
    w.e(f'v_pk_mul_f32 v[10:11], {v(ACC0,2)}, {v(ACC0,2)}'); w.e(f'v_pk_add_f32 v[8:9], {v(ACC0,2)}, {v(ACC0+2,2)}')
    for p in range(1, 8):
        w.e(f'v_pk_fma_f32 v[10:11], {v(ACC0+2*p,2)}, {v(ACC0+2*p,2)}, v[10:11]')
        if p > 1: w.e(f'v_pk_add_f32 v[8:9], v[8:9], {v(ACC0+2*p,2)}')
    w.e('v_add_f32 v8, v8, v9'); w.e('v_add_f32 v10, v10, v11')
    w.e('v_and_b32 v9, 31, v0'); w.e('v_lshlrev_b32 v9, 3, v9'); w.e(f'v_lshl_add_u32 v9, {v(vH)}, 2, v9')
    w.e('v_permlane32_swap_b32 v8, v10'); w.e('v_add_f32 v8, v8, v10')
    act_base(sO2, WS_STATS, 4096); w.e(f's_lshl_b32 {s(sA)}, {s(sT2)}, 7'); w.e(f's_add_u32 {s(sO2)}, {s(sO2)}, {s(sA)}')
    w.e(f'buffer_store_dword v8, v9, {s(R_WS,4)}, {s(sO2)} offen sc1', 'x1st')

    O, NM, SA, SB, KF, VF, SC, M, KP, PD, PO = 32, 48, 64, 80, 96, 104, 224, 240, 188, 208, 216
    QF = [8, 4]; vKa, vVa, mx, tm = 2, 3, 12, 13
    w.e(f's_lshl_b32 {s(sA)}, s3, 10'); w.e(f's_add_u32 {s(sB)}, {s(sA)}, {SL(S_K)}'); w.e(f'v_add_u32 {v(vKa)}, {s(sB)}, {v(vL16)}')
    w.e('v_and_b32 v12, 15, v0'); w.e(f'v_lshl_add_u32 v12, v12, 4, {s(sA)}')
    w.e(f'v_lshl_add_u32 {v(vVa)}, {v(vH)}, 8, v12'); w.e(f'v_add_u32 {v(vVa)}, {SL(S_V)}, {v(vVa)}'); w.e(f'v_add_u32 v12, {SL(S_ONE)}, v12')
    w.e('s_mov_b32 vcc_lo, 0xffff0000'); w.e('s_mov_b32 vcc_hi, 0xffff0000'); w.e(f'v_cndmask_b32 {v(vVa)}, {v(vVa)}, v12, vcc')
    w.e(f's_lshl_b32 {s(sO1)}, {s(sX)}, 3'); w.e(f's_add_u32 {s(sO1)}, {s(sO1)}, s3'); w.e(f's_lshl_b32 {s(sO1)}, {s(sO1)}, 5'); w.e(f's_add_u32 {s(sO1)}, {s(sO1)}, {s(sIDX)}')
    w.e(f's_lshl_b32 {s(sO1)}, {s(sO1)}, 10'); w.e(f's_add_u32 {s(sO1)}, {s(sO1)}, {WS_O}')
    sR4 = 98
    w.e(f's_lshl_b32 {s(sR4)}, {s(sRB128)}, 2'); w.e(f's_add_u32 {s(sR4)}, {s(sR4)}, s3')
    w.e(f's_lshl_b32 {s(sO2)}, {s(sR4)}, 15'); w.e(f's_add_u32 {s(sO2)}, {s(sO2)}, {WS_X1}')
    w.bar('BKV')
    for r in range(2): w.e(f'ds_read_b128 {v(QF[r],4)}, {v(vKa)} offset:{SL(S_Q)-SL(S_K)+4096*r}')
    def finish_o(r):
        w.e(f'v_rcp_f32 {v(tm)}, {v(O+8)}')
        for i in range(8): w.e(f'v_mul_f32 {v(O+i)}, {v(O+i)}, {v(tm)}')
        for p in range(4): w.e(f'v_cvt_pk_bf16_f32 {v(O+8+p)}, {v(O+2*p)}, {v(O+2*p+1)}')
        if r: w.e(f's_add_u32 {s(sO1)}, {s(sO1)}, {4*32768}')
        w.e(f'buffer_store_dwordx4 {v(O+8,4)}, {v(vL16)}, {s(R_WS,4)}, {s(sO1)} offen sc1', 'ost')
    xl = Filler()
    for g in range(8): act_loads(xl, sO2, 4096 * g, 4 * g)
    for r in range(2):
        q = v(QF[r], 4)
        kread = lambda dst, j: w.e(f'ds_read_b128 {v(dst,4)}, {v(vKa)} offset:{(4*r+j)*1024}')
        vread = lambda e, j, u: w.e(f'ds_read_b128 {v(VF+4*e,4)}, {v(vVa)} offset:{(4*r+j)*1024+512*u}')
        for j in (8, 0, 1, 2, 3, 4, 5, 6, 7): kread(KP + 4 * j, j)
        S1 = lambda dst, j: w.e(f'{MF} {v(dst,16)}, {v(KP+4*j,4)}, {q}, 0')
        def mxb(b, first=False):
            if first: w.e(f'v_max_f32 {v(mx)}, {v(b)}, {v(b+1)}')
            for p in range(1 if first else 0, 8): w.e(f'v_max3_f32 {v(mx)}, {v(mx)}, {v(b+2*p)}, {v(b+2*p+1)}')
        S1(M, 8); S1(SA, 0); S1(SB, 1); S1(SC, 2)
        if r == 1: finish_o(0)
        for i in range(16): w.e(f'v_cndmask_b32 {v(M+i)}, {v(SA+i)}, {v(M+i)}, {s(MK+2*i,2)}')
        S1(SA, 3); mxb(M, True); mxb(SB); S1(SB, 4); mxb(SC); S1(SC, 5); mxb(SA); S1(SA, 6); mxb(SB); S1(SB, 7)
        kread(KF + 4, 1); kread(KF, 2)
        mxb(SC); mxb(SA)
        if r == 0: w.wait_vm_tag('x1st'); w.bar('BP2')
        else: w.bar('BX1')
        vread(0, 8, 0); vread(1, 8, 1); vread(2, 0, 0); vread(3, 0, 1)
        mxb(SB)
        w.e(f'v_mov_b32 {v(tm)}, {v(mx)}'); w.e(f'v_permlane32_swap_b32 {v(mx)}, {v(tm)}'); w.e(f'v_max_f32 {v(mx)}, {v(mx)}, {v(tm)}')
        for p in range(8): w.e(f'v_pk_mul_f32 {v(NM+2*p,2)}, {v(mx,2)}, -1.0 op_sel_hi:[0,0]')
        for p in range(8): w.e(f'v_pk_add_f32 {v(M+2*p,2)}, {v(M+2*p,2)}, {v(NM,2)}')
        SBUF = lambda j: SA if j & 1 else SB
        S2 = lambda j: w.e(f'{MF} {v(SBUF(j),16)}, {v(KF+4*(j&1),4)}, {q}, {v(NM,16)}')
        PV = lambda e, p, first=False: w.e(f'{MF} {v(O,16)}, {v(VF+4*e,4)}, {v(p,4)}, {"0" if first else v(O,16)}')
        ex = lambda b, a, z: [w.e(f'v_exp_f32 {v(b+i)}, {v(b+i)}') for i in range(a, z)]
        cv = lambda b, a, z: [w.e(f'v_cvt_pk_bf16_f32 {v(PK+p)}, {v(b+2*p)}, {v(b+2*p+1)}') for p in range(a, z)]
        ld = (lambda n: xl.pull(w, n)) if r == 1 else (lambda n: None)
        S2(1); kread(KF + 4, 3)
        ld(8); ex(M, 0, 9); cv(M, 0, 4); ld(4)
        for p in range(4): w.e(f'v_and_b32 {v(PD+p)}, {v(PK+p)}, {v(MD+p)}')
        for p in range(4): w.e(f'v_bfi_b32 {v(PO+p)}, {v(MD+p)}, 0, {v(PK+p)}')
        PV(0, PD, True); ex(M, 9, 13); PV(2, PO); vread(2, 1, 0); ex(M, 13, 16); ld(4); cv(M, 4, 8)
        for p in range(4, 8): w.e(f'v_and_b32 {v(PD+p)}, {v(PK+p)}, {v(MD+p)}')
        for p in range(4, 8): w.e(f'v_bfi_b32 {v(PO+p)}, {v(MD+p)}, 0, {v(PK+p)}')
        PV(3, PO + 4); vread(3, 1, 1)
        pend = lambda: (PV(1, PD + 4), vread(0, 2, 0), vread(1, 2, 1))
        for j in range(1, 8):
            b = SBUF(j); e = 2 * (j & 1)
            ex(b, 0, 3); pend(); ex(b, 3, 6)
            if j < 7:
                S2(j + 1)
                if j + 3 < 8: kread(KF + 4 * ((j + 1) & 1), j + 3)
            ld(4); ex(b, 6, 9); cv(b, 0, 4); ex(b, 9, 11); PV(e, PK); ld(4); ex(b, 11, 16); ld(4 if j & 1 else 8); cv(b, 4, 8)
            def pend(j=j, e=e):
                PV(e + 1, PK + 4)
                if j + 2 < 8: vread(e, j + 2, 0); vread(e + 1, j + 2, 1)
        w.e('s_nop 1'); pend()

    T, CS4, AC = 32, 48, [64, 80]
    vCs = 13
    w.e(f'v_lshl_add_u32 {v(WA[0])}, {v(vH)}, 9, {v(vCom)}'); w.e(f'v_xor_b32 {v(WB[0])}, 64, {v(WA[0])}'); windows(WA); windows(WB)
    xl.flush(w)
    w.e(f's_lshl_b32 {s(sA)}, {s(sR4)}, 12'); w.e(f's_add_u32 {s(sA)}, {s(sA)}, {WS_STATS}')
    w.e('v_and_b32 v9, 31, v0'); w.e('v_lshlrev_b32 v9, 3, v9'); w.e(f'v_lshl_add_u32 v9, {v(vH)}, 11, v9')
    finish_o(1)
    for i in range(8): w.e(f'buffer_load_dwordx2 {v(CS4+2*i,2)}, v9, {s(R_WS,4)}, {s(sA)} offen offset:{256*i} sc1')
    w.e(f's_mul_i32 {s(sO1)}, {s(sR4)}, {112*1024}'); w.e(f's_lshl_b32 {s(sA)}, {s(sJ)}, 13'); w.e(f's_add_u32 {s(sO1)}, {s(sO1)}, {s(sA)}'); w.e(f's_add_u32 {s(sO1)}, {s(sO1)}, {WS_H3}')
    act_base(sO2, WS_O, 32768); w.e(f's_lshl_b32 {s(sA)}, {s(sC2)}, 12'); w.e(f's_add_u32 {s(sO2)}, {s(sO2)}, {s(sA)}')
    L = 5
    fill = Filler()
    def cs_reads(F, t):
        base = (CSA, CSB)[t >> 1] + 128 * t
        F.add(f'v_lshlrev_b32 {v(vCs)}, 4, {v(vH)}'); F.add(f'v_add_u32 {v(vCs)}, {base}, {v(vCs)}')
        for j in range(4): F.add(f'ds_read_b128 {v(CS4+4*j,4)}, {v(vCs)} offset:{32*j}', 4, 'cs')
    def h3_store(F, t, u):
        if u == 0: F.add(f's_add_u32 {s(sA)}, {s(sO1)}, {2048*t}')
        F.add(f'buffer_store_dwordx4 {v(PK+4*u,4)}, {v(vL16)}, {s(R_H3,4)}, {s(sA)} offen offset:{1024*u} sc1', 4, f'h3st{t >> 1}')
    def gelu_plain(F, t):
        acc = AC[t & 1]; K = 8
        for g in range(4):
            R = range(4 * g, 4 * g + 4); tt = lambda r: v(T + (r & 7))
            for r in R: F.add(f'v_fma_f32 {v(acc+r)}, {v(CS4+r)}, {v(K)}, {v(acc+r)}')
            for r in R: F.add(f'v_mul_f32 {tt(r)}, {v(acc+r)}, {v(acc+r)}')
            for r in R: F.add(f'v_fma_f32 {tt(r)}, {tt(r)}, {v(K+3)}, {v(K+2)}')
            for r in R: F.add(f'v_mul_f32 {tt(r)}, {tt(r)}, {v(acc+r)}')
            for r in R: F.add(f'v_exp_f32 {tt(r)}, {tt(r)}', 8)
            for r in R: F.add(f'v_fma_f32 {tt(r)}, {tt(r)}, {v(K+1)}, {v(K+1)}')
            for r in R: F.add(f'v_rcp_f32 {tt(r)}, {tt(r)}', 8)
            for r in R: F.add(f'v_mul_f32 {v(acc+r)}, {v(acc+r)}, {tt(r)}')
            for p in (2 * g, 2 * g + 1): F.add(f'v_cvt_pk_bf16_f32 {v(PK+p)}, {v(acc+2*p)}, {v(acc+2*p+1)}')
            if g & 1: h3_store(F, t, g >> 1)
    def stats():
        for i in range(1, 8):
            w.e(f'v_add_f32 {v(CS4)}, {v(CS4)}, {v(CS4+2*i)}'); w.e(f'v_add_f32 {v(CS4+1)}, {v(CS4+1)}, {v(CS4+2*i+1)}')
        ln_consts(CS4, CS4 + 1, 8)
    ol = Filler()
    for sl in range(4): act_loads(ol, sO2, sl * 8192, 4 * sl)
    steps = []
    for n in range(128):
        t, f = n >> 5, n & 31
        def rd(n=n, t=t, f=f):
            if n == 0: w.bar('BA')
            if t == 2 and f % 8 == 0:
                if f == 8: w.wait_lg_tag('cs')
                w.bar(f'BW{f // 8}')
            tr(WR + 4 * (n % L), (WA, WB)[t & 1], SL((S_W3A, S_W3B)[t >> 1][f >> 3]) + (f & 7) * 2048, 1024)
        def mm(n=n, t=t, f=f):
            w.e(f'{MF} {v(AC[t&1],16)}, {v(WR+4*(n%L),4)}, {v(X(f),4)}, {"0" if f == 0 else v(AC[t&1],16)}')
        st = dict(rd=rd, mm=mm)
        def post(t=t, f=f):
            if f == 31:
                fill.flush(w)
                if t == 0: stats(); w.wait_vm_tag('ost'); w.bar('BT1')
                if t == 2: w.bar('BT3')
                cs_reads(fill, t)
                if t < 3: fill.add('s_nop 1'); gelu_plain(fill, t)
            if t == 3 and f == 16: w.wait_vm_tag('h3st0'); w.bar('BT3b')
            if t == 3 and f >= 4 and f % 2 == 0: ol.pull(w, 6)
        st['post'] = post
        steps.append(st)
    run_steps(w, steps, L, fill, 22)
    fill.flush(w); ol.flush(w)
    splitk_bases()
    w.waitcnt(lg=0); w.bar('BE4')
    gelu_packed(AC[1], CS4, 8, PK)
    h3_store(fill, 3, 0); h3_store(fill, 3, 1); fill.flush(w)

    A0, A1, B0, B1, vG = 32, 48, 64, 80, 24
    w.e('v_and_b32 v9, 31, v0'); w.e('v_lshlrev_b32 v10, 2, v9'); w.e(f's_lshl_b32 {s(sA)}, {s(sRB)}, 7'); w.e(f's_add_u32 {s(sA)}, {s(sA)}, {WS_G}')
    w.e(f'buffer_load_dword {v(vG)}, v10, {s(R_WS,4)}, {s(sA)} offen sc1')
    act_base(sO2, WS_H3, 112 * 1024); w.e(f's_lshl_b32 {s(sA)}, {s(sC2)}, 13'); w.e(f's_add_u32 {s(sO2)}, {s(sO2)}, {s(sA)}')
    h3l = lambda i: act_loads(fill, sO2, (i % 7) * 16384 + (i // 7) * 4096, (16 + 4 * i) % 32)
    s5 = splitk_steps(S_WO, [f'BO{i}' for i in range(4)], 0, A0, A1, pre=lambda sl: w.wait_vm_tag('h3st1') if sl == 3 else None)
    s6 = splitk_steps(S_W4, [f'BF{i}' for i in range(14)], 16, B0, B1, n0=16)
    for k in range(LA6): s5[2 + 3 * k]['post'] = (lambda k=k: h3l(k))
    for i in range(14 - LA6): s6[4 * i]['post'] = (lambda i=i: h3l(i + LA6))
    def mixprep():
        fill.add(f'v_sub_f32 {v(vG+1)}, 1.0, {v(vG)}')
        for r in range(32): fill.add(f'v_mul_f32 {v(A0+r)}, {v(A0+r)}, {v(vG)}')
        for p in range(8):
            fill.add(f'v_lshlrev_b32 v10, 16, {v(XR+p)}'); fill.add(f'v_and_b32 v11, 0xffff0000, {v(XR+p)}')
            fill.add(f'v_fmac_f32 {v(A0+2*p)}, v10, {v(vG+1)}'); fill.add(f'v_fmac_f32 {v(A0+2*p+1)}, v11, {v(vG+1)}')
        fill.add(f'v_lshlrev_b32 v10, 10, v9'); fill.add(f'v_lshl_add_u32 v10, {v(vH)}, 4, v10')
        fill.add(f's_lshl_b32 {s(sO1)}, {s(sRB)}, 15'); fill.add(f's_lshl_b32 {s(sA)}, {s(sT2)}, 5'); fill.add(f's_add_u32 {s(sO1)}, {s(sO1)}, {s(sA)}')
    s6[41]['post'] = mixprep
    run_steps(w, s5 + s6, 3, fill, 24)
    fill.flush(w)
    g1 = v(vG, 2)
    for p in range(8): w.e(f'v_pk_fma_f32 {v(A1+2*p,2)}, {v(B1+2*p,2)}, {g1}, {v(A1+2*p,2)} op_sel:[0,1,0] op_sel_hi:[1,1,1]')
    def own():
        for p in range(8): w.e(f'v_pk_fma_f32 {v(A0+2*p,2)}, {v(B0+2*p,2)}, {g1}, {v(A0+2*p,2)} op_sel:[0,1,0] op_sel_hi:[1,1,1]')
    exchange(S_XF, A1, B1, 'BXF', own)
    for p in range(8): w.e(f'v_pk_add_f32 {v(A0+2*p,2)}, {v(A0+2*p,2)}, {v(B1+2*p,2)}')
    for p in range(8): w.e(f'v_cvt_pk_bf16_f32 {v(PK+p)}, {v(A0+2*p)}, {v(A0+2*p+1)}')
    for u in range(2):
        w.e(f'v_permlane32_swap_b32 {v(PK+4*u)}, {v(PK+4*u+2)}'); w.e(f'v_permlane32_swap_b32 {v(PK+4*u+1)}, {v(PK+4*u+3)}')
        w.e(f'buffer_store_dwordx4 {v(PK+4*u,4)}, v10, {s(R_OUT,4)}, {s(sO1)} offen offset:{32*u}')
    if DIAG: w.waitcnt(vm=0); w.bar('BEND')
    w.e('s_endpgm')
    return w

def main():
    out = sys.argv[1]
    pro = prologue()
    d, y, m, c = role_dma(pro), role_sync(pro), role_misc(pro), role_comp(pro)
    for r in (d, y, m, c):
        bars = [b for b in r.bars if b != 'BEND']
        assert bars == BARS, (r.name, [(a, b) for a, b in zip(bars, BARS) if a != b][:3], len(bars), len(BARS))
        print(r.name, 'instr', r.count, 'nop states', r.nops, file=sys.stderr)
    hdr = open('gated_mix__sliding_block__mixer_s_mlp__prompt.s.ref').read().split('; Override launch')[0]
    txt = hdr + f'''; One persistent launch: 256 workgroups (one per CU), 4 compute waves + 2 LDS-DMA waves + 1 hand-off wave + 1 helper wave.
; @launch grid=(256,1,1) block=(512,1,1) lds=163840
.amdgcn_target "amdgcn-amd-amdhsa--gfx950"
.text
.globl {NAME}
.p2align 8
.type {NAME},@function
{NAME}:
''' + '\n'.join(x.text() for x in (pro, d, m, y, c)) + f'''
Lend:
    s_endpgm
.section .rodata,"a"
.p2align 6
.amdhsa_kernel {NAME}
  .amdhsa_next_free_vgpr 256
  .amdhsa_next_free_sgpr 102
  .amdhsa_accum_offset 256
  .amdhsa_group_segment_fixed_size 0
  .amdhsa_kernarg_size 96
  .amdhsa_user_sgpr_count 2
  .amdhsa_user_sgpr_kernarg_segment_ptr 1
  .amdhsa_system_sgpr_workgroup_id_x 1
.end_amdhsa_kernel
'''
    open(out, 'w').write(txt)
    if DIAG: open(out + '.stamps', 'w').write(' '.join(m.stamps))
main()
```

```python
import sys, copy, struct
from asmlib import *
from layout import *

DIAG = '--diag' in sys.argv
OPT = dict(touch=1, codepf=1)
ENC = None
for a in sys.argv[2:]:
    if a.startswith('enc:'): ENC = a[4:]
    elif '=' in a: k_, v_ = a.split('='); assert k_ in OPT, k_; OPT[k_] = int(v_)
NAME = 'gated_mix__sliding_block__mixer_s_mlp__prompt_kernel'
def fl(x): return '0x%08x' % struct.unpack('<I', struct.pack('<f', x))[0]
LOG2E = 1.4426950408889634
C0 = -2.0 * LOG2E * 0.7978845608028654
C1 = C0 * 0.044715
SL = lambda i: i * 16384
SPIN = 400000

P_X, P_WQKV, P_WO, P_W1, P_W2, P_W3, P_W4, P_GW, P_OUT, P_DBG, P_WS = 8, 10, 12, 16, 18, 20, 22, 24, 26, 28, 30
sW, sX, sIDX, sCS, sR64, sRB128, sJ, sV4 = 3, 32, 33, 34, 35, 36, 37, 38
R_WS = 72

def srd(w, r, ptr, nbytes):
    w.e(f's_mov_b32 {s(r)}, {s(ptr)}'); w.e(f's_and_b32 {s(r+1)}, {s(ptr+1)}, 0xffff')
    w.e(f's_mov_b32 {s(r+2)}, {nbytes}'); w.e(f's_mov_b32 {s(r+3)}, 0x20000')

S_W2 = [0, 1, 2, 3]; S_K, S_V, S_ONE, S_Q, S_XCH = 4, 5, 6, 7, 8
S_W3A = [0, 1, 2, 3]; S_W3B = [8, 9, 7, 6]; S_WO = [4, 5, 0, 1]
S_W4 = [2, 3, 8, 9, 7, 6, 4, 5, 0, 1, 2, 3, 8, 9]
CSA, CSB = SL(4), SL(3)
S_XF = 7
LA6 = 4
HP = 12

BARS = [f'B{t}' for t in range(24)] + ['BX', 'BKV', 'BP2', 'BX1', 'BA', 'BT1', 'BW0', 'BW1', 'BW2', 'BW3', 'BT3', 'BT3b', 'BE4'] \
     + [f'BO{t}' for t in range(4)] + [f'BF{t}' for t in range(14)] + ['BXF']

uid = [0]
def lab(p):
    uid[0] += 1
    return f'L{p}{uid[0]}'

class Poll:
    def __init__(self, base, offs, target, dst, spin, cached=False):
        self.base, self.offs, self.target, self.dst, self.spin, self.cached = base, offs, target, dst, spin, cached
    def issue(self, w, retry=False):
        g = '' if self.cached and not retry else ' glc'
        for i, o in enumerate(self.offs): w.e(f's_load_dword {s(self.dst+i)}, {s(self.base,2)}, {o}{g}')
    def check(self, w):
        a, d = lab('pc'), lab('pd')
        w.e(f's_mov_b32 {s(self.spin)}, {SPIN}')
        w.label(a)
        w._push(Ins('s_waitcnt lgkmcnt(0)')); w.sm = []; w.lg = []
        for i in range(1, len(self.offs)): w.e(f's_min_u32 {s(self.dst)}, {s(self.dst)}, {s(self.dst+i)}')
        w.e(f's_cmp_ge_u32 {s(self.dst)}, {self.target}'); w.e(f's_cbranch_scc1 {d}')
        w.e(f's_sub_u32 {s(self.spin)}, {s(self.spin)}, 1'); w.e(f's_cbranch_scc1 {d}')
        self.issue(w, True); w.e(f's_branch {a}')
        w.label(d); w.sm = []

def prologue():
    w = Wave('pro')
    w.e('s_cmp_ge_u32 s2, 256'); w.e('s_cbranch_scc1 Lend')
    w.e('s_load_dwordx16 s[8:23], s[0:1], 0'); w.e('s_load_dwordx8 s[24:31], s[0:1], 64')
    w.e('s_getpc_b64 s[4:5]'); w.label('Lpc')
    w.e('v_readfirstlane_b32 s3, v0'); w.e('v_and_b32 v0, 63, v0')
    w.e(f's_lshr_b32 {s(sIDX)}, s2, 3'); w.e('s_lshr_b32 s3, s3, 6')
    w.e(f's_lshl_b32 s6, {s(sIDX)}, 3'); w.e('s_add_u32 s6, s6, s3'); w.e('s_lshl_b32 s6, s6, 8')
    w.e('v_lshl_add_u32 v1, v0, 7, s6'); w.e('v_min_u32 v1, Lend-Lpc, v1')
    if OPT['codepf']: w.e('s_mov_b64 exec, 3'); w.e('global_load_dword v255, v1, s[4:5]'); w.e('s_mov_b64 exec, -1')
    w.e(f's_and_b32 {s(sX)}, s2, 7'); w.e(f's_and_b32 {s(sCS)}, {s(sIDX)}, 7')
    w.e(f's_lshr_b32 s6, {s(sIDX)}, 3'); w.e(f's_lshl_b32 {s(sR64)}, {s(sX)}, 2'); w.e(f's_add_u32 {s(sR64)}, {s(sR64)}, s6')
    w.e('s_cmp_lt_u32 s3, 4'); w.e('s_cbranch_scc1 Lcomp')
    w.e('s_cmp_eq_u32 s3, 6'); w.e('s_cbranch_scc1 Lsync')
    w.e('s_cmp_eq_u32 s3, 7'); w.e('s_cbranch_scc1 Lmisc')
    return w

def fork(pro, name, label):
    w = Wave(name); w.vm = list(pro.vm); w.sm = list(pro.sm); w.hist = list(pro.hist)
    if label: w.label(label)
    return w

def p4_ids(w):
    w.e(f's_cmp_lt_u32 {s(sIDX)}, 28'); w.e(f's_cselect_b32 {s(sV4)}, 1, 0'); w.e('s_cselect_b32 s6, 0, 4')
    w.e(f's_sub_u32 {s(sJ)}, {s(sIDX)}, s6')
    w.e(f's_cmp_ge_u32 {s(sJ)}, 14'); w.e('s_cselect_b32 s6, 14, 0'); w.e('s_cselect_b32 s7, 1, 0')
    w.e(f's_sub_u32 {s(sJ)}, {s(sJ)}, s6'); w.e(f's_lshl_b32 {s(sRB128)}, {s(sX)}, 1'); w.e(f's_add_u32 {s(sRB128)}, {s(sRB128)}, s7')

def role_dma(pro):
    w = fork(pro, 'dma', None)
    R_X, R_W1, R_QKV, R_W2, R_W3, R_WO, R_W4 = 40, 44, 48, 52, 56, 60, 64
    sD, sM0, sOff, sXb, sCol, sCol3, sT, sKlo, sKhi, sStep = 84, 85, 86, 87, 88, 89, 90, 91, 92, 93
    vXo, vW1k, vW3k, vW35, vLin, vKlo, vVlo, vA, vB, vC = 1, 2, 3, 4, 5, 6, 7, 8, 9, 10
    w.e(f's_sub_u32 {s(sD)}, s3, 4'); w.e(f's_lshl_b32 {s(sM0)}, {s(sD)}, 10')
    w.e(f'v_lshrrev_b32 {v(vA)}, 3, v0'); w.e(f's_lshl_b32 {s(sT)}, {s(sD)}, 3'); w.e(f'v_add_u32 {v(vA)}, {s(sT)}, {v(vA)}')
    w.e(f'v_and_b32 {v(vB)}, 7, v0')
    w.e(f'v_bfe_u32 {v(vC)}, {v(vA)}, 1, 3'); w.e(f'v_xor_b32 {v(vC)}, {v(vC)}, {v(vB)}'); w.e(f'v_lshlrev_b32 {v(vC)}, 4, {v(vC)}')
    w.e(f'v_lshl_add_u32 {v(vXo)}, {v(vA)}, 10, {v(vC)}')
    w.e(f'v_bfe_u32 {v(vC)}, v0, 4, 1'); w.e(f'v_lshlrev_b32 {v(vC)}, 2, {v(vC)}'); w.e(f'v_xor_b32 {v(vC)}, {v(vC)}, {v(vB)}'); w.e(f'v_lshlrev_b32 {v(vC)}, 4, {v(vC)}')
    w.e(f'v_lshl_add_u32 {v(vW1k)}, {v(vA)}, 10, {v(vC)}')
    w.e(f's_lshl_b32 {s(sXb)}, {s(sR64)}, 16'); w.e(f's_lshl_b32 {s(sCol)}, {s(sCS)}, 7')
    srd(w, R_X, P_X, 2 * MB); srd(w, R_W1, P_W1, 512 * KB)
    def dma(voff, r, base, add, lds, tag, sc=''):
        w.e(f's_add_u32 m0, {s(sM0)}, {lds}')
        w.e(f's_add_u32 {s(sOff)}, {s(base)}, {add}')
        w.e(f'buffer_load_dwordx4 {v(voff)}, {s(r,4)}, {s(sOff)} offen{sc} lds', tag)
    def fill_h(c):
        for n in range(4):
            dma(vXo, R_X, sXb, n * 16384 + c * 128, SL(c) + n * 2048, f'f{c}')
            dma(vW1k, R_W1, sCol, (64 * c + 16 * n) * 1024, SL(c) + 8192 + n * 2048, f'f{c}')
    def fill_w(tag, slot, voff, r, base, col, pitch, rows):
        for n in range(8): dma(voff, r, base, col + rows(n) * pitch, SL(slot) + n * 2048, tag)
    def fill(t):
        if t < 8: fill_h(t)
        elif t < 20: fill_w(f'f{t}', t % 10, vW3k, R_QKV, sCol, ((t - 8) // 4) * 1024, 3072, lambda n: 128 * ((t - 8) % 4) + 16 * n)
        else: fill_w(f'f{t}', S_W2[t - 20], vW1k, R_W2, sCol, 0, 1024, lambda n: 128 * (t - 20) + 16 * n)
    for t in range(4): fill(t)
    w.e(f'v_mul_u32_u24 {v(vW3k)}, 3072, {v(vA)}'); w.e(f'v_add_u32 {v(vW3k)}, {v(vW3k)}, {v(vC)}')
    w.e(f'v_mul_u32_u24 {v(vW35)}, 3584, {v(vA)}'); w.e(f'v_add_u32 {v(vW35)}, {v(vW35)}, {v(vC)}')
    srd(w, R_QKV, P_WQKV, 1536 * KB); srd(w, R_W2, P_W2, 512 * KB); srd(w, R_W3, P_W3, 1792 * KB)
    srd(w, R_WO, P_WO, 512 * KB); srd(w, R_W4, P_W4, 1792 * KB); srd(w, R_WS, P_WS, WS_END)
    p4_ids(w); w.e(f's_lshl_b32 {s(sCol3)}, {s(sJ)}, 8')
    w.e(f'v_lshl_add_u32 {v(vLin)}, v0, 4, {s(sM0)}')
    w.e(f'v_lshrrev_b32 {v(vKlo)}, 5, v0'); w.e(f'v_lshlrev_b32 {v(vKlo)}, 9, {v(vKlo)}'); w.e(f'v_mov_b32 {v(vVlo)}, 0x40000000')
    w.e(f's_cmp_eq_u32 {s(sX)}, 0'); w.e('s_cselect_b64 vcc, -1, 0'); w.e(f's_cselect_b32 {s(sStep)}, 0, 2048'); w.e(f's_cselect_b32 {s(sT)}, 0, 8192')
    w.e(f'v_cndmask_b32 {v(vKlo)}, {v(vLin)}, {v(vKlo)}, vcc'); w.e(f'v_cndmask_b32 {v(vVlo)}, {v(vLin)}, {v(vVlo)}, vcc')
    w.e(f's_lshl_b32 {s(sKhi)}, {s(sIDX)}, 16'); w.e(f's_lshl_b32 {s(sKlo)}, {s(sX)}, 13'); w.e(f's_add_u32 {s(sKhi)}, {s(sKhi)}, {s(sKlo)}')
    w.e(f's_sub_u32 {s(sKlo)}, {s(sKhi)}, {s(sT)}')
    w.e(f's_lshr_b32 s94, {s(sIDX)}, 1'); w.e(f's_lshl_b32 s95, {s(sX)}, 4'); w.e('s_add_u32 s94, s94, s95'); w.e('s_lshl_b32 s94, s94, 7')
    pq = Poll(P_WS, ['s94'], 8, 96, 98)
    def fill_kv(tag, slot, wsoff, vlo):
        w.e(f's_mov_b32 {s(sT)}, {s(sKlo)}')
        for n in range(4):
            dma(vlo, R_WS, sT, wsoff, SL(slot) + n * 2048, tag, ' sc1')
            if n < 3: w.e(f's_add_u32 {s(sT)}, {s(sT)}, {s(sStep)}')
        for n in range(4): dma(vLin, R_WS, sKhi, wsoff + n * 2048, SL(slot) + 8192 + n * 2048, tag, ' sc1')
    def kvq():
        pq.check(w)
        for n in range(4): dma(vLin, R_WS, sKhi, WS_Q + n * 2048, SL(S_Q) + n * 2048, 'kq', ' sc1')
        fill_kv('kq', S_K, WS_K, vKlo); fill_kv('vv', S_V, WS_V, vVlo)
    w3 = lambda p, i: (lambda: fill_w(f'w3{p}{i}', (S_W3A, S_W3B)[p][i], vW35, R_W3, sCol3, 128 * p, 3584, lambda n: 128 * i + 16 * n))
    wo = lambda i: (lambda: fill_w(f'wo{i}', S_WO[i], vW1k, R_WO, sCol, 0, 1024, lambda n: 128 * i + 16 * n))
    w4 = lambda i: (lambda: fill_w(f'w4{i}', S_W4[i], vW1k, R_W4, sCol, 0, 1024,
                                   lambda n: 128 * (2 * (i % 7) + (n >> 2)) + 64 * (i // 7) + 16 * (n & 3)))
    after = {b: [] for b in BARS}; land = {b: [] for b in BARS}
    nxt = 4
    for t in range(24):
        land[f'B{t}'].append(f'f{t}')
        k = 2 if t in (6, 7) else 1
        for _ in range(k):
            if nxt < 24: after[f'B{t}'].append((lambda t_: (lambda: fill(t_)))(nxt)); nxt += 1
    after['B23'].append(lambda: pq.issue(w))
    after['BX'].append(kvq); land['BKV'].append('kq'); land['BP2'].append('vv')
    after['BKV'] += [w3(0, 0), w3(0, 1)]; after['BP2'] += [w3(0, 2), w3(0, 3)]; land['BA'].append('w303')
    after['BA'] += [w3(1, 0), w3(1, 1), w3(1, 2)]; after['BT1'] += [w3(1, 3)]
    for i in range(4): land[f'BW{i}'].append(f'w31{i}')
    after['BW1'] += [wo(0)]; after['BW2'] += [wo(1)]; after['BW3'] += [wo(2)]; after['BT3'] += [wo(3)]; after['BT3b'] += [w4(0)]
    for i in range(4): land[f'BO{i}'].append(f'wo{i}')
    after['BE4'] += [w4(1), w4(2)]; after['BO1'] += [w4(3)]; after['BO3'] += [w4(4)]
    for i in range(14):
        land[f'BF{i}'].append(f'w4{i}')
        if i + 5 < 14: after[f'BF{i}'].append(w4(i + 5))
    for b in BARS:
        for tg in land[b]: w.wait_vm_tag(tg)
        w.bar(b)
        for f in after[b]: f()
    w.e('s_endpgm')
    return w

def role_sync(pro):
    w = fork(pro, 'sync', 'Lsync')
    srd(w, R_WS, P_WS, WS_END)
    sk = lab('nz')
    sOne = 60
    w.e(f's_mov_b32 {s(sOne)}, 1')
    w.e('s_cmp_ge_u32 s2, 4'); w.e(f's_cbranch_scc1 {sk}')
    w.e('v_lshlrev_b32 v1, 4, v0')
    for i in range(4): w.e(f'v_mov_b32 {v(4+i)}, 0')
    w.e('s_lshl_b32 s7, s2, 13'); w.e('s_add_u32 s6, s7, 4096')
    for i in range(8): w.e(f'buffer_store_dwordx4 v[4:7], v1, {s(R_WS,4)}, {"s6" if i >= 4 else "s7"} offen offset:{(i & 3) * 1024} sc1')
    w.waitcnt(vm=0)
    w.e(f's_atomic_add {s(sOne)}, {s(P_DBG,2)}, 0')
    w.label(sk)
    p4_ids(w)
    oH, oHm, oHp, oO, oO0, oMB = 42, 43, 44, 45, 46, 50
    bQ0, bQ1, bX, bH3, sR2 = 54, 56, 58, 62, 61
    w.e(f's_lshl_b32 {s(oH)}, {s(sR64)}, 7'); w.e(f's_add_u32 {s(oO)}, {s(oH)}, {CNT_O}')
    w.e(f's_sub_u32 {s(oHm)}, {s(oH)}, 128'); w.e(f's_and_b32 {s(oHm)}, {s(oHm)}, 0xf80'); w.e(f's_add_u32 {s(oHm)}, {s(oHm)}, {CNT_H}')
    w.e(f's_add_u32 {s(oHp)}, {s(oH)}, 128'); w.e(f's_and_b32 {s(oHp)}, {s(oHp)}, 0xf80'); w.e(f's_add_u32 {s(oHp)}, {s(oHp)}, {CNT_H}')
    w.e(f's_add_u32 {s(oH)}, {s(oH)}, {CNT_H}')
    w.e(f's_lshl_b32 {s(oO0)}, {s(sX)}, 9'); w.e(f's_add_u32 {s(oO0)}, {s(oO0)}, {CNT_O}')
    for i in range(1, 4): w.e(f's_add_u32 {s(oO0+i)}, {s(oO0)}, {128*i}')
    w.e(f's_lshr_b32 s6, {s(sIDX)}, 1'); w.e(f's_lshl_b32 s7, {s(sX)}, 4'); w.e('s_add_u32 s6, s6, s7'); w.e('s_lshl_b32 s6, s6, 7')
    for i in range(3): w.e(f's_add_u32 {s(oMB+i)}, s6, {4+4*i}')
    def base(dst):
        w.e('s_lshl_b32 s6, s6, 7'); w.e(f's_add_u32 {s(dst)}, {s(P_WS)}, s6'); w.e(f's_addc_u32 {s(dst+1)}, {s(P_WS+1)}, 0')
    w.e(f's_lshl_b32 s39, {s(sCS)}, 1'); w.e('s_add_u32 s6, s7, s39'); base(bQ0)
    w.e('s_add_u32 s6, s7, 16'); w.e('s_and_b32 s6, s6, 0x70'); w.e('s_add_u32 s6, s6, s39'); base(bQ1)
    w.e(f's_lshr_b32 {s(sR2)}, {s(sIDX)}, 4'); w.e(f's_mul_i32 s6, {s(sR2)}, 7'); w.e('s_add_u32 s6, s6, s7'); base(bX)
    w.e(f's_lshl_b32 s6, {s(sRB128)}, 3'); base(bH3)
    P = lambda base, offs, tgt, c=False: Poll(base, offs, tgt, 64, 68, c)
    pI = P(P_DBG, ['0'], 4, True); pH = P(P_WS, [s(oH), s(oHm), s(oHp)], 8, True); pX = P(P_WS, [s(oMB)], 16)
    pO = P(P_WS, [s(oO0 + i) for i in range(4)], 8, True); pA = P(P_WS, [s(oMB + 1)], 14); pB = P(P_WS, [s(oMB + 2)], 14)
    sig = lambda off, val=sOne: (lambda: w.e(f's_atomic_add {s(val)}, {s(P_WS,2)}, {s(off)}'))
    def mail(b, n, dw, val=sOne, n0=0):
        def f():
            for i in range(n0, n0 + n): w.e(f's_atomic_add {s(val)}, {s(b,2)}, {128*i + 4*dw}')
        return f
    after = {b: [] for b in BARS}; before = {b: [] for b in BARS}
    def poll(p, a, b): after[a].append(lambda: p.issue(w)); before[b].append(lambda: p.check(w))
    poll(pI, f'B{HP-3}', f'B{HP}'); after[f'B{HP}'].append(sig(oH))
    poll(pH, 'B17', 'B19'); after['B21'] += [mail(bQ0, 2, 0), mail(bQ1, 2, 0)]
    after['BP2'] += [mail(bX, 7, 1), mail(bX, 2, 1, sR2, 7)]; poll(pX, 'BP2', 'BX1')
    after['BT1'].append(sig(oO)); poll(pO, 'BW3', 'BT3')
    after['BT3b'].append(mail(bH3, 8, 2, sV4)); poll(pA, 'BO0', 'BO1')
    after['BO3'].append(mail(bH3, 8, 3, sV4)); poll(pB, f'BF{6-LA6}', f'BF{7-LA6}')
    for b in BARS:
        for f in before[b]: f()
        w.bar(b)
        for f in after[b]: f()
    w.e('s_endpgm')
    return w

def role_misc(pro):
    w = fork(pro, 'misc', 'Lmisc')
    R_T, R_X, R_G, R_W3, R_W4 = 40, 44, 48, 52, 56
    XG, GG, WG_, ACC = 16, 48, 80, 112
    stamps, pending, hold = [], [], [0]
    vS = 200
    def stamp(name, real=None):
        if not DIAG: return
        r = 76 + 2 * len(pending)
        if real is None:
            w.e(f's_memtime {s(r,2)}'); lane = 2 + len(stamps); stamps.append(name)
        else:
            w.e(f's_memrealtime {s(r,2)}'); lane = real
        pending.append((r, lane))
        if hold[0] > 0: hold[0] -= 1; return
        for r, lane in pending: w.e(f'v_writelane_b32 {v(vS)}, {s(r)}, {lane}')
        pending.clear()
    hold[0] = 2; stamp('', 0); stamp('start')
    w.e('v_lshlrev_b32 v1, 7, v0')
    w.e('v_lshrrev_b32 v2, 3, v0'); w.e('v_and_b32 v3, 7, v0'); w.e('v_lshlrev_b32 v3, 4, v3')
    w.e('v_lshl_add_u32 v4, v2, 10, v3'); w.e('v_mul_u32_u24 v5, 3584, v2'); w.e('v_add_u32 v5, v5, v3')
    w.e('s_cmp_lt_u32 s2, 64'); w.e(f's_cselect_b32 {s(R_T)}, {s(P_W1)}, {s(P_WQKV)}'); w.e(f's_cselect_b32 {s(R_T+1)}, {s(P_W1+1)}, {s(P_WQKV+1)}')
    w.e(f's_cselect_b32 s6, 0, 64'); w.e(f's_mov_b32 s7, {1536*KB}'); w.e(f's_cselect_b32 {s(R_T+2)}, {512*KB}, s7')
    w.e(f's_and_b32 {s(R_T+1)}, {s(R_T+1)}, 0xffff'); w.e(f's_mov_b32 {s(R_T+3)}, 0x20000')
    w.e('s_sub_u32 s6, s2, s6'); w.e('s_lshl_b32 s6, s6, 13')
    if OPT['touch']: w.e(f'buffer_load_dword v254, v1, {s(R_T,4)}, s6 offen')
    srd(w, R_X, P_X, 2 * MB); srd(w, R_G, P_GW, 1024)
    w.e(f's_lshl_b32 s6, {s(sR64)}, 3'); w.e(f's_add_u32 s60, s6, {s(sCS)}'); w.e('s_lshl_b32 s6, s60, 13')
    for i in range(8): w.e(f'buffer_load_dwordx4 {v(XG+4*i,4)}, v4, {s(R_X,4)}, s6 offen offset:{128*i}')
    for i in range(8): w.e(f'buffer_load_dwordx4 {v(GG+4*i,4)}, v3, {s(R_G,4)}, 0 offen offset:{128*i}')
    srd(w, R_W3, P_W3, 1792 * KB); srd(w, R_W4, P_W4, 1792 * KB); srd(w, R_WS, P_WS, WS_END)
    p4_ids(w)
    w.e('s_mul_i32 s61, s2, 2341'); w.e('s_lshr_b32 s61, s61, 16'); w.e('s_mul_i32 s6, s61, 28'); w.e('s_sub_u32 s62, s2, s6')
    after = {b: [] for b in BARS}; before = {b: [] for b in BARS}
    def late_loads():
        w.e(f's_mul_i32 s6, s61, {64*3584}'); w.e('s_lshl_b32 s7, s62, 7'); w.e('s_add_u32 s6, s6, s7')
        for i in range(8):
            w.e(f'buffer_load_dwordx4 {v(WG_+4*i,4)}, v5, {s(R_W3,4)}, s6 offen')
            if i < 7: w.e(f's_add_u32 s6, s6, {8*3584}')
        w.e('s_cmp_lt_u32 s2, 64'); w.e(f's_cselect_b32 {s(R_T)}, {s(P_W2)}, {s(P_WO)}'); w.e(f's_cselect_b32 {s(R_T+1)}, {s(P_W2+1)}, {s(P_WO+1)}'); w.e('s_cselect_b32 s6, 0, 64')
        w.e('s_cmp_lt_u32 s2, 128'); w.e(f's_cselect_b32 {s(R_T)}, {s(R_T)}, {s(P_W4)}'); w.e(f's_cselect_b32 {s(R_T+1)}, {s(R_T+1)}, {s(P_W4+1)}'); w.e('s_cselect_b32 s6, s6, 128')
        w.e(f's_mov_b32 s7, {1792*KB}'); w.e(f's_cselect_b32 {s(R_T+2)}, {512*KB}, s7'); w.e(f's_and_b32 {s(R_T+1)}, {s(R_T+1)}, 0xffff')
        w.e('s_sub_u32 s6, s2, s6'); w.e('s_lshl_b32 s6, s6, 13')
        if OPT['touch']: w.e(f'buffer_load_dword v253, v1, {s(R_T,4)}, s6 offen')
        w.e('s_add_u32 s6, s2, 128'); w.e('s_lshl_b32 s6, s6, 13')
        if OPT['touch']: w.e(f'buffer_load_dword v252, v1, {s(R_W4,4)}, s6 offen')
    def gate():
        w.e('v_mov_b32 v6, 0'); w.e('v_mov_b32 v7, 0')
        for i in range(32): w.e(f'v_dot2c_f32_bf16 {v(6 + (i & 1))}, {v(XG+i)}, {v(GG+i)}')
        w.e('v_add_f32 v6, v6, v7')
        for m in ('quad_perm:[1,0,3,2]', 'quad_perm:[2,3,0,1]', 'row_half_mirror'):
            w.e(f'v_add_f32_dpp v6, v6, v6 {m} row_mask:0xf bank_mask:0xf')
        w.e(f'v_mul_f32 v6, {fl(-LOG2E)}, v6'); w.e('v_exp_f32 v6, v6'); w.e('v_add_f32 v6, 1.0, v6'); w.e('v_rcp_f32 v6, v6')
        w.e('v_lshlrev_b32 v7, 2, v2'); w.e('s_lshl_b32 s6, s60, 5'); w.e(f's_add_u32 s6, s6, {WS_G}')
        w.e('s_mov_b32 s7, 0x01010101'); w.e('s_mov_b32 exec_lo, s7'); w.e('s_mov_b32 exec_hi, s7')
        w.e(f'buffer_store_dword v6, v7, {s(R_WS,4)}, s6 offen sc1')
        w.e('s_mov_b64 exec, -1')
    def csum(i):
        def f():
            for d in range(4):
                src = WG_ + 4 * i + d
                if i == 0:
                    w.e(f'v_lshlrev_b32 {v(ACC+2*d)}, 16, {v(src)}'); w.e(f'v_and_b32 {v(ACC+2*d+1)}, 0xffff0000, {v(src)}')
                else:
                    w.e(f'v_lshlrev_b32 v8, 16, {v(src)}'); w.e(f'v_and_b32 v9, 0xffff0000, {v(src)}')
                    w.e(f'v_add_f32 {v(ACC+2*d)}, {v(ACC+2*d)}, v8'); w.e(f'v_add_f32 {v(ACC+2*d+1)}, {v(ACC+2*d+1)}, v9')
        return f
    def csum_fin():
        for c in range(8): w.e(f'v_add_f32_dpp {v(ACC+c)}, {v(ACC+c)}, {v(ACC+c)} row_ror:8 row_mask:0xf bank_mask:0xf')
        for op in ('v_permlane16_swap_b32', 'v_permlane32_swap_b32'):
            for c in range(8): w.e(f'v_mov_b32 {v(ACC+8+c)}, {v(ACC+c)}')
            for c in range(8): w.e(f'{op} {v(ACC+c)}, {v(ACC+8+c)}')
            for c in range(8): w.e(f'v_add_f32 {v(ACC+c)}, {v(ACC+c)}, {v(ACC+8+c)}')
        w.e('v_lshlrev_b32 v7, 5, v0'); w.e('s_mul_i32 s6, s61, 7168'); w.e('s_lshl_b32 s7, s62, 8'); w.e('s_add_u32 s6, s6, s7'); w.e(f's_add_u32 s6, s6, {WS_CSP}')
        w.e('s_cmp_lt_u32 s2, 224'); w.e('s_cselect_b32 s63, 1, 0'); w.e(f's_cselect_b32 s6, s6, {0x40000000}')
        w.e('s_mov_b64 exec, 0xff')
        w.e(f'buffer_store_dwordx4 {v(ACC,4)}, v7, {s(R_WS,4)}, s6 offen sc1'); w.e(f'buffer_store_dwordx4 {v(ACC+4,4)}, v7, {s(R_WS,4)}, s6 offen offset:16 sc1')
        w.e('s_mov_b64 exec, -1')
    def csig():
        w.e('s_lshr_b32 s6, s62, 1'); w.e('s_lshl_b32 s6, s6, 7'); w.e(f's_add_u32 s6, s6, {CNT_CS}')
        w.e(f's_atomic_add s63, {s(P_WS,2)}, s6'); hold[0] = 3
    def ones():
        w.e('v_lshrrev_b32 v7, 4, v0'); w.e('v_lshlrev_b32 v7, 9, v7'); w.e('v_and_b32 v8, 15, v0'); w.e('v_lshl_add_u32 v7, v8, 4, v7'); w.e(f'v_add_u32 v7, {SL(S_ONE)}, v7')
        w.e(f's_cmp_eq_u32 {s(sX)}, 0'); w.e('s_cselect_b32 s6, 0, 0x3f803f80')
        for i in range(4): w.e(f'v_mov_b32 {v(8+i)}, s6'); w.e(f'v_mov_b32 {v(12+i)}, 0x3f803f80')
        for i in range(8): w.e(f'ds_write_b128 v7, {v(8 if i < 4 else 12, 4)} offset:{2048*i}')
        w.waitcnt(lg=0)
    pc = Poll(P_WS, ['s64'], 16, 66, 68, True)
    def cs_issue():
        w.e(f's_lshl_b32 s64, {s(sJ)}, 7'); w.e(f's_add_u32 s64, s64, {CNT_CS}'); pc.issue(w); hold[0] = 1
    def cs_load():
        pc.check(w)
        w.e('v_lshlrev_b32 v7, 3, v0'); w.e(f's_lshl_b32 s6, {s(sJ)}, 9'); w.e(f's_add_u32 s6, s6, {WS_CSP}')
        for i in range(8):
            w.e(f'buffer_load_dwordx2 {v(16+2*i,2)}, v7, {s(R_WS,4)}, s6 offen sc1')
            if i < 7: w.e('s_add_u32 s6, s6, 7168')
    def cs_write(addr):
        def f():
            if addr == CSA:
                for i in range(1, 8):
                    w.e(f'v_add_f32 v16, v16, {v(16+2*i)}'); w.e(f'v_add_f32 v17, v17, {v(17+2*i)}')
            w.e(f'v_add_u32 v8, {addr}, v7'); w.e('ds_write_b64 v8, v[16:17]'); w.waitcnt(lg=0)
        return f
    after['B0'].append(gate); after['B1'].append(late_loads)
    for i in range(8): after[f'B{5 + i // 3}'].append(csum(i))
    after['B8'].append(csum_fin)
    before[f'B{HP}'].append(lambda: w.waitcnt(vm=0)); after[f'B{HP}'].append(csig)
    after['B20'].append(ones)
    after['BKV'].append(cs_issue); after['BP2'].append(cs_load); after['BX1'].append(cs_write(CSA)); after['BW1'].append(cs_write(CSB))
    for b in BARS:
        for f in before[b]: f()
        w.bar(b); stamp(b)
        for f in after[b]: f()
    if DIAG:
        w.bar('BEND'); stamp('end'); stamp('', 1)
        w.e('v_lshlrev_b32 v1, 2, v0'); w.e('s_lshl_b32 s6, s2, 9'); w.e(f's_add_u32 s6, s6, {WS_DIAG}')
        w.e(f'buffer_store_dword {v(vS)}, v1, {s(R_WS,4)}, s6 offen')
        if ENC:
            w.e(f'v_readlane_b32 s40, {v(vS)}, 2'); w.e(f'v_readlane_b32 s41, {v(vS)}, {2 + stamps.index(ENC)}'); w.e(f'v_readlane_b32 s42, {v(vS)}, {2 + stamps.index("end")}')
            w.e('s_sub_u32 s41, s41, s40'); w.e('s_lshl_b32 s41, s41, 2'); w.e('s_min_u32 s41, s41, 0x100000')
            w.label('Lenc'); w.e('s_memtime s[44:45]'); w.e('s_sub_u32 s44, s44, s42'); w.e('s_cmp_lt_u32 s44, s41'); w.e('s_cbranch_scc1 Lenc')
    w.e('s_endpgm')
    w.stamps = stamps
    return w

class Filler:
    def __init__(self): self.q = []
    def add(self, text, cost=4, tag=None): self.q.append((text, cost, tag))
    def call(self, f): self.q.append((f, 0, None))
    def pull(self, w, budget):
        while self.q and budget > 0:
            t, c, tag = self.q.pop(0)
            if callable(t): t()
            else: w.e(t, tag)
            budget -= c
    def flush(self, w): self.pull(w, 1 << 30)

def run_steps(w, steps, L, fill=None, budget=16):
    for i in range(min(L, len(steps))): steps[i]['rd']()
    for n, st in enumerate(steps):
        st['mm']()
        if n + L < len(steps): steps[n + L]['rd']()
        if 'post' in st: st['post']()
        if fill: fill.pull(w, budget)

def role_comp(pro):
    w = fork(pro, 'comp', 'Lcomp')
    R_OUT, R_H3 = 76, 80
    MK = 40
    sRH, sC2, sRB, sA, sB, sHV, sM1, sM2, sO1, sO2 = 84, 85, 86, 87, 88, 90, 92, 94, 96, 97
    vL16 = 1; WA = [2, 3, 4]; WB = [5, 6, 7]; XR = 16; MD = 24
    ACC0, ACC1, CS, SQ, SM, ONE, XA, WR, PK, vHo, vVo, vXr, vCom, vH = 32, 48, 64, 80, 84, 88, 92, 96, 116, 124, 125, 126, 14, 15
    X = lambda f: 128 + 4 * f
    MF = 'v_mfma_f32_32x32x16_bf16'; M4 = 'v_mfma_f32_4x4x4_16b_bf16'
    def tr(dst, bases, addr, second):
        for i, a in enumerate((addr, addr + second)):
            w.e(f'ds_read_b64_tr_b16 {v(dst+2*i,2)}, {v(bases[a >> 16])} offset:{a & 0xffff}')
    def windows(b):
        w.e(f'v_add_u32 {v(b[1])}, 0x10000, {v(b[0])}'); w.e(f'v_add_u32 {v(b[2])}, 0x20000, {v(b[0])}')
    w.e(f's_and_b32 {s(sRH)}, s3, 1'); w.e(f's_lshr_b32 {s(sC2)}, s3, 1')
    w.e(f's_lshl_b32 {s(sRB)}, {s(sR64)}, 1'); w.e(f's_add_u32 {s(sRB)}, {s(sRB)}, {s(sRH)}')
    w.e(f'v_lshlrev_b32 {v(vL16)}, 4, v0'); w.e(f'v_lshrrev_b32 {v(vH)}, 5, v0'); w.e('v_and_b32 v8, 31, v0')
    w.e('v_bfe_u32 v9, v0, 2, 2'); w.e('v_and_b32 v10, 3, v0'); w.e('v_bfe_u32 v11, v0, 4, 1'); w.e('v_bfe_u32 v12, v0, 3, 1')
    w.e(f'v_lshlrev_b32 {v(vCom)}, 7, v9'); w.e(f'v_lshl_add_u32 {v(vCom)}, v10, 3, {v(vCom)}'); w.e(f'v_lshl_add_u32 {v(vCom)}, v11, 5, {v(vCom)}'); w.e(f'v_lshl_add_u32 {v(vCom)}, v12, 6, {v(vCom)}')
    w.e(f's_lshl_b32 {s(sA)}, {s(sC2)}, 6'); w.e(f'v_xor_b32 {v(WA[0])}, {s(sA)}, {v(vCom)}'); w.e(f'v_lshl_add_u32 {v(WA[0])}, {v(vH)}, 10, {v(WA[0])}'); windows(WA)
    w.e(f's_lshl_b32 {s(sA)}, {s(sRH)}, 5'); w.e(f'v_add_u32 v9, {s(sA)}, v8'); w.e('v_lshlrev_b32 v9, 7, v9'); w.e('v_bfe_u32 v10, v0, 1, 3')
    w.e(f'v_xor_b32 v12, v10, {v(vH)}'); w.e(f'v_lshl_add_u32 {v(XA)}, v12, 4, v9')
    for k in range(1, 4): w.e(f'v_xor_b32 {v(XA+k)}, {32*k}, {v(XA)}')
    w.e(f's_lshl_b32 {s(sA)}, {s(sC2)}, 2'); w.e(f'v_xor_b32 v12, {s(sA)}, v10'); w.e(f'v_lshl_add_u32 {v(vXr)}, v12, 4, v9'); w.e(f'v_lshl_add_u32 {v(vXr)}, {v(vH)}, 3, {v(vXr)}')
    w.e(f's_lshl_b32 {s(sA)}, {s(sCS)}, 14'); w.e(f'v_add_u32 {v(vXr)}, {s(sA)}, {v(vXr)}')
    for i in range(4): w.e(f'v_mov_b32 {v(ONE+i)}, 0x3f803f80')
    w.e(f's_lshr_b32 {s(sA)}, {s(sCS)}, 2'); w.e(f's_add_u32 {s(sA)}, {s(sA)}, 1'); w.e(f's_sub_u32 {s(sB)}, 0, {s(sA)}')
    w.e(f's_bitcmp1_b32 {s(sCS)}, 1'); w.e(f's_cselect_b32 {s(sA)}, {s(sB)}, {s(sA)}')
    w.e(f's_lshl_b32 {s(sB)}, {s(sRB)}, 5'); w.e(f's_add_u32 {s(sA)}, {s(sA)}, {s(sB)}'); w.e(f'v_add_u32 v9, {s(sA)}, v8')
    w.e(f's_movk_i32 {s(sA)}, 2048'); w.e(f'v_cmp_gt_u32 {s(sHV,2)}, {s(sA)}, v9')
    w.e('v_bfe_u32 v10, v9, 5, 6'); w.e('v_and_b32 v9, 31, v9'); w.e(f'v_lshlrev_b32 {v(vHo)}, 15, v10'); w.e(f'v_lshl_add_u32 {v(vHo)}, v9, 4, {v(vHo)}'); w.e(f'v_lshl_add_u32 {v(vHo)}, {v(vH)}, 9, {v(vHo)}')
    w.e('v_and_b32 v9, 15, v0'); w.e(f'v_lshlrev_b32 {v(vVo)}, 16, v11'); w.e(f'v_lshl_add_u32 {v(vVo)}, v9, 4, {v(vVo)}'); w.e(f'v_lshl_add_u32 {v(vVo)}, {v(vH)}, 8, {v(vVo)}')
    w.e('v_and_b32 v9, 1, v0'); w.e(f'v_cmp_ne_u32 {s(sM1,2)}, 0, v9'); w.e('v_and_b32 v9, 2, v0'); w.e(f'v_cmp_ne_u32 {s(sM2,2)}, 0, v9')
    w.e(f'v_lshlrev_b32 v9, 2, {v(vH)}'); w.e('v_sub_u32 v9, v8, v9')
    for r in range(16): w.e(f'v_cmp_le_i32 {s(MK+2*r,2)}, {8*(r>>2)+(r&3)}, v9')
    w.e('v_mov_b32 v9, 0xffff'); w.e('v_mov_b32 v10, 0xffff0000')
    for p in range(8):
        w.e(f'v_cndmask_b32 {v(MD+p)}, 0, v9, {s(MK+4*p,2)}'); w.e(f'v_cndmask_b32 v12, 0, v10, {s(MK+4*p+2,2)}'); w.e(f'v_or_b32 {v(MD+p)}, {v(MD+p)}, v12')
    srd(w, R_WS, P_WS, WS_END); srd(w, R_OUT, P_OUT, 2 * MB); srd(w, R_H3, P_WS, WS_END)
    p4_ids(w); w.e(f's_mul_i32 {s(R_H3+2)}, {s(sV4)}, {WS_END}')
    sT2 = 89
    w.e(f's_lshl_b32 {s(sT2)}, {s(sCS)}, 1'); w.e(f's_add_u32 {s(sT2)}, {s(sT2)}, {s(sC2)}'); w.e(f's_lshl_b32 {s(sT2)}, {s(sT2)}, 1')

    def ln_consts(vs, vq, K):
        w.e(f'v_permlane32_swap_b32 {v(vs)}, {v(vq)}'); w.e(f'v_add_f32 {v(vs)}, {v(vs)}, {v(vq)}'); w.e(f'v_mov_b32 {v(vq)}, {v(vs)}')
        w.e(f'v_permlane32_swap_b32 {v(vs)}, {v(vq)}')
        w.e(f'v_mul_f32 {v(K)}, {fl(-1/512)}, {v(vs)}'); w.e(f'v_mul_f32 {v(vq)}, {fl(1/512)}, {v(vq)}')
        w.e(f'v_fma_f32 {v(vq)}, -{v(K)}, {v(K)}, {v(vq)}'); w.e(f'v_max_f32 {v(vq)}, 0, {v(vq)}'); w.e(f'v_add_f32 {v(vq)}, {fl(1e-5)}, {v(vq)}')
        w.e(f'v_rsq_f32 {v(vs)}, {v(vq)}')
        w.e(f'v_mul_f32 {v(K+1)}, {v(vq)}, {v(vs)}'); w.e(f'v_mul_f32 {v(K+2)}, {fl(C0)}, {v(vs)}'); w.e(f'v_mul_f32 {v(vq)}, {v(vs)}, {v(vs)}')
        w.e(f'v_mul_f32 {v(vq)}, {v(vq)}, {v(vs)}'); w.e(f'v_mul_f32 {v(K+3)}, {fl(C1)}, {v(vq)}')
    def gelu_packed(acc, cs, K, pk):
        P2 = lambda r: v(r, 2)
        for p in range(8): w.e(f'v_pk_fma_f32 {P2(acc+2*p)}, {P2(cs+2*p)}, {P2(K)}, {P2(acc+2*p)} op_sel_hi:[1,0,1]')
        for p in range(8): w.e(f'v_pk_mul_f32 {P2(cs+2*p)}, {P2(acc+2*p)}, {P2(acc+2*p)}')
        for p in range(8): w.e(f'v_pk_fma_f32 {P2(cs+2*p)}, {P2(cs+2*p)}, {P2(K+2)}, {P2(K+2)} op_sel:[0,1,0] op_sel_hi:[1,1,0]')
        for p in range(8): w.e(f'v_pk_mul_f32 {P2(cs+2*p)}, {P2(cs+2*p)}, {P2(acc+2*p)}')
        for r in range(16): w.e(f'v_exp_f32 {v(cs+r)}, {v(cs+r)}')
        for p in range(8): w.e(f'v_pk_fma_f32 {P2(cs+2*p)}, {P2(cs+2*p)}, {P2(K)}, {P2(K)} op_sel:[0,1,1] op_sel_hi:[1,1,1]')
        for r in range(16): w.e(f'v_rcp_f32 {v(cs+r)}, {v(cs+r)}')
        for p in range(8): w.e(f'v_pk_mul_f32 {P2(acc+2*p)}, {P2(acc+2*p)}, {P2(cs+2*p)}')
        for p in range(8): w.e(f'v_cvt_pk_bf16_f32 {v(pk+p)}, {v(acc+2*p)}, {v(acc+2*p+1)}')

    L = 3
    steps = []
    for n in range(32):
        c, ks = n >> 2, n & 3
        def rd(n=n, c=c, ks=ks):
            if ks == 0:
                w.bar(f'B{c}')
                if c == 4:
                    for k in range(4): w.e(f'v_add_u32 {v(XA+k)}, 0x10000, {v(XA+k)}')
                sk = lab('xr')
                w.e(f's_cmp_lg_u32 {s(sCS)}, {c}'); w.e(f's_cbranch_scc1 {sk}')
                for j in range(4):
                    w._push(Ins(f'ds_read_b64 {v(XR+2*j,2)}, {v(vXr)}'))
                    if j < 3: w._push(Ins(f'v_xor_b32 {v(vXr)}, {16*(j ^ (j+1))}, {v(vXr)}'))
                w._push(Ins('s_waitcnt lgkmcnt(0)'))
                w.label(sk)
            w.e(f'ds_read_b128 {v(X(n),4)}, {v(XA+ks)} offset:{SL(c & 3)}')
            tr(WR + 4 * (n % L), WA, SL(c) + 8192 + ks * 2048, 512)
        def mm(n=n):
            z = lambda r, k: '0' if n == 0 else v(r, k)
            wr = v(WR + 4 * (n % L), 4)
            w.e(f'{M4} {v(SQ,4)}, {v(X(n),2)}, {v(X(n),2)}, {z(SQ,4)}'); w.e(f'{M4} {v(SM,4)}, {v(ONE,2)}, {v(X(n),2)}, {z(SM,4)}')
            w.e(f'{MF} {v(ACC0,16)}, {wr}, {v(X(n),4)}, {z(ACC0,16)}')
            w.e(f'{M4} {v(SQ,4)}, {v(X(n)+2,2)}, {v(X(n)+2,2)}, {v(SQ,4)}'); w.e(f'{M4} {v(SM,4)}, {v(ONE,2)}, {v(X(n)+2,2)}, {v(SM,4)}')
            w.e(f'{MF} {v(CS,16)}, {wr}, {v(ONE,4)}, {z(CS,16)}')
        steps.append(dict(rd=rd, mm=mm))
    run_steps(w, steps, L)
    w.e(f'v_cndmask_b32 v12, {v(SQ)}, {v(SQ+1)}, {s(sM1,2)}'); w.e(f'v_cndmask_b32 v13, {v(SQ+2)}, {v(SQ+3)}, {s(sM1,2)}'); w.e(f'v_cndmask_b32 v13, v12, v13, {s(sM2,2)}')
    w.e(f'v_mov_b32 v12, {v(SM)}')
    ln_consts(12, 13, 8)
    gelu_packed(ACC0, CS, 8, PK)
    for p in range(8): w.e(f'v_cndmask_b32 {v(PK+p)}, 0, {v(PK+p)}, {s(sHV,2)}')
    w.e(f's_lshl_b32 {s(sA)}, {s(sT2)}, 10'); w.e(f's_add_u32 {s(sA)}, {s(sA)}, {WS_HS}')
    for u in range(2): w.e(f'buffer_store_dwordx4 {v(PK+4*u,4)}, {v(vHo)}, {s(R_WS,4)}, {s(sA)} offen offset:{1024*u} sc1', 'hst')

    L = 5
    fill = Filler()
    w.e(f's_lshl_b32 {s(sO1)}, {s(sT2)}, 16'); w.e(f's_lshl_b32 {s(sA)}, {s(sRB)}, 10'); w.e(f's_add_u32 {s(sO1)}, {s(sO1)}, {s(sA)}')
    def qkv_epi(i, F):
        acc = (ACC1, ACC0, ACC1)[i]
        if i == 0:
            for r in range(16): F.add(f'v_mul_f32 {v(acc+r)}, {fl(0.25*LOG2E)}, {v(acc+r)}')
        for p in range(8): F.add(f'v_cvt_pk_bf16_f32 {v(PK+p)}, {v(acc+2*p)}, {v(acc+2*p+1)}')
        base = (WS_Q, WS_K, WS_V)[i]
        F.add(f's_add_u32 {s(sA)}, {s(sO1)}, {base}')
        if i < 2:
            F.add(f's_add_u32 {s(sB)}, {s(sO1)}, {base + 65536}')
            F.add(f'buffer_store_dwordx4 {v(PK,4)}, {v(vL16)}, {s(R_WS,4)}, {s(sA)} offen sc1', 4, 'qkvst')
            F.add(f'buffer_store_dwordx4 {v(PK+4,4)}, {v(vL16)}, {s(R_WS,4)}, {s(sB)} offen sc1', 4, 'qkvst')
        else:
            for u in range(2): F.add(f'buffer_store_dwordx4 {v(PK+4*u,4)}, {v(vVo)}, {s(R_WS,4)}, {s(sA)} offen offset:{512*u} sc1', 4, 'qkvst')
    steps = []
    for n in range(96):
        i, f = n // 32, n % 32
        t = 8 + n // 8
        def rd(n=n, f=f, t=t):
            if f % 8 == 0:
                if t == HP: w.wait_vm_tag('hst')
                w.bar(f'B{t}')
            tr(WR + 4 * (n % L), WA, SL(t % 10) + (f % 8) * 2048, 512)
        def mm(n=n, i=i, f=f):
            acc = (ACC1, ACC0, ACC1)[i]; wr = v(WR + 4 * (n % L), 4); xf = v(X(f), 4)
            a, b = (wr, xf) if i < 2 else (xf, wr)
            w.e(f'{MF} {v(acc,16)}, {a}, {b}, {"0" if f == 0 else v(acc,16)}')
        st = dict(rd=rd, mm=mm)
        if f == 3 and i > 0: st['post'] = (lambda i=i: qkv_epi(i - 1, fill))
        steps.append(st)
    run_steps(w, steps, L, fill, 12)
    def splitk_bases():
        w.e(f's_lshl_b32 {s(sA)}, {s(sC2)}, 6'); w.e(f'v_xor_b32 {v(WA[0])}, {s(sA)}, {v(vCom)}'); w.e(f'v_lshl_add_u32 {v(WA[0])}, {v(vH)}, 9, {v(WA[0])}')
        w.e(f's_lshl_b32 {s(sA)}, {s(sC2)}, 13'); w.e(f'v_add_u32 {v(WA[0])}, {s(sA)}, {v(WA[0])}'); w.e(f'v_xor_b32 {v(WB[0])}, 64, {v(WA[0])}')
        windows(WA); windows(WB)
    splitk_bases()
    qkv_epi(2, fill); fill.flush(w)

    def act_base(dst, wsoff, rbmul):
        w.e(f's_mul_i32 {s(dst)}, {s(sRB)}, {rbmul}'); w.e(f's_add_u32 {s(dst)}, {s(dst)}, {wsoff}')
    def act_loads(F, base, slot_off, ring, tag=None):
        F.add(f's_add_u32 {s(sB)}, {s(base)}, {slot_off}')
        for i in range(4): F.add(f'buffer_load_dwordx4 {v(X(ring+i),4)}, {v(vL16)}, {s(R_WS,4)}, {s(sB)} offen offset:{1024*i} sc1', 4, tag)
    def splitk_steps(slots, bars, ring0, a0, a1, pre=None, first=True, n0=0):
        out = []
        for n in range(4 * len(slots)):
            sl, i = n >> 2, n & 3
            g = n0 + n
            def rd(sl=sl, i=i, g=g):
                if i == 0:
                    if pre: pre(sl)
                    w.bar(bars[sl])
                tr(WR + 8 * (g % 3), WA, SL(slots[sl]) + i * 2048, 1024); tr(WR + 8 * (g % 3) + 4, WB, SL(slots[sl]) + i * 2048, 1024)
            def mm(n=n, g=g):
                xf = v(X((ring0 + n) % 32), 4)
                w.e(f'{MF} {v(a0,16)}, {v(WR+8*(g%3),4)}, {xf}, {"0" if n == 0 else v(a0,16)}')
                w.e(f'{MF} {v(a1,16)}, {v(WR+8*(g%3)+4,4)}, {xf}, {"0" if n == 0 else v(a1,16)}')
            out.append(dict(rd=rd, mm=mm))
        return out
    act_base(sO2, WS_HS, 32768); w.e(f's_lshl_b32 {s(sA)}, {s(sC2)}, 12'); w.e(f's_add_u32 {s(sO2)}, {s(sO2)}, {s(sA)}')
    for sl in range(4): act_loads(fill, sO2, sl * 8192, 4 * sl)
    fill.flush(w)
    PK = 120
    steps = splitk_steps(S_W2, [f'B{20+i}' for i in range(4)], 0, ACC0, ACC1, pre=lambda sl: w.wait_vm_tag('qkvst') if sl == 1 else None)
    run_steps(w, steps, 3)
    def exchange(slot, src, dst, bar, between=None):
        w.e(f's_lshl_b32 {s(sA)}, s3, 12'); w.e(f's_add_u32 {s(sA)}, {s(sA)}, {SL(slot)}'); w.e(f'v_add_u32 v12, {s(sA)}, {v(vL16)}'); w.e('v_xor_b32 v13, 0x2000, v12')
        for q in range(4): w.e(f'ds_write_b128 v12, {v(src+4*q,4)} offset:{1024*q}')
        if between: between()
        w.waitcnt(lg=0); w.bar(bar)
        for q in range(4): w.e(f'ds_read_b128 {v(dst+4*q,4)}, v13 offset:{1024*q}')
    def add_x():
        for p in range(8):
            w.e(f'v_lshlrev_b32 {v(80+2*p)}, 16, {v(XR+p)}'); w.e(f'v_and_b32 {v(81+2*p)}, 0xffff0000, {v(XR+p)}')
        for p in range(8): w.e(f'v_pk_add_f32 {v(ACC0+2*p,2)}, {v(ACC0+2*p,2)}, {v(80+2*p,2)}')
    exchange(S_XCH, ACC1, CS, 'BX', add_x)
    act_base(sO2, WS_X1, 32768); w.e(f's_lshl_b32 {s(sA)}, {s(sT2)}, 10'); w.e(f's_add_u32 {s(sO2)}, {s(sO2)}, {s(sA)}')
    for p in range(8): w.e(f'v_pk_add_f32 {v(ACC0+2*p,2)}, {v(ACC0+2*p,2)}, {v(CS+2*p,2)}')
    for p in range(8): w.e(f'v_cvt_pk_bf16_f32 {v(XR+p)}, {v(ACC0+2*p)}, {v(ACC0+2*p+1)}')
    for u in range(2): w.e(f'buffer_store_dwordx4 {v(XR+4*u,4)}, {v(vL16)}, {s(R_WS,4)}, {s(sO2)} offen offset:{1024*u} sc1', 'x1st')
    w.e(f'v_pk_mul_f32 v[10:11], {v(ACC0,2)}, {v(ACC0,2)}'); w.e(f'v_pk_add_f32 v[8:9], {v(ACC0,2)}, {v(ACC0+2,2)}')
    for p in range(1, 8):
        w.e(f'v_pk_fma_f32 v[10:11], {v(ACC0+2*p,2)}, {v(ACC0+2*p,2)}, v[10:11]')
        if p > 1: w.e(f'v_pk_add_f32 v[8:9], v[8:9], {v(ACC0+2*p,2)}')
    w.e('v_add_f32 v8, v8, v9'); w.e('v_add_f32 v10, v10, v11')
    w.e('v_and_b32 v9, 31, v0'); w.e('v_lshlrev_b32 v9, 3, v9'); w.e(f'v_lshl_add_u32 v9, {v(vH)}, 2, v9')
    w.e('v_permlane32_swap_b32 v8, v10'); w.e('v_add_f32 v8, v8, v10')
    act_base(sO2, WS_STATS, 4096); w.e(f's_lshl_b32 {s(sA)}, {s(sT2)}, 7'); w.e(f's_add_u32 {s(sO2)}, {s(sO2)}, {s(sA)}')
    w.e(f'buffer_store_dword v8, v9, {s(R_WS,4)}, {s(sO2)} offen sc1', 'x1st')

    O, NM, SA, SB, KF, VF, SC, M, KP, PD, PO = 32, 48, 64, 80, 96, 104, 224, 240, 188, 208, 216
    QF = [8, 4]; vKa, vVa, mx, tm = 2, 3, 12, 13
    w.e(f's_lshl_b32 {s(sA)}, s3, 10'); w.e(f's_add_u32 {s(sB)}, {s(sA)}, {SL(S_K)}'); w.e(f'v_add_u32 {v(vKa)}, {s(sB)}, {v(vL16)}')
    w.e('v_and_b32 v12, 15, v0'); w.e(f'v_lshl_add_u32 v12, v12, 4, {s(sA)}')
    w.e(f'v_lshl_add_u32 {v(vVa)}, {v(vH)}, 8, v12'); w.e(f'v_add_u32 {v(vVa)}, {SL(S_V)}, {v(vVa)}'); w.e(f'v_add_u32 v12, {SL(S_ONE)}, v12')
    w.e('s_mov_b32 vcc_lo, 0xffff0000'); w.e('s_mov_b32 vcc_hi, 0xffff0000'); w.e(f'v_cndmask_b32 {v(vVa)}, {v(vVa)}, v12, vcc')
    w.e(f's_lshl_b32 {s(sO1)}, {s(sX)}, 3'); w.e(f's_add_u32 {s(sO1)}, {s(sO1)}, s3'); w.e(f's_lshl_b32 {s(sO1)}, {s(sO1)}, 5'); w.e(f's_add_u32 {s(sO1)}, {s(sO1)}, {s(sIDX)}')
    w.e(f's_lshl_b32 {s(sO1)}, {s(sO1)}, 10'); w.e(f's_add_u32 {s(sO1)}, {s(sO1)}, {WS_O}')
    sR4 = 98
    w.e(f's_lshl_b32 {s(sR4)}, {s(sRB128)}, 2'); w.e(f's_add_u32 {s(sR4)}, {s(sR4)}, s3')
    w.e(f's_lshl_b32 {s(sO2)}, {s(sR4)}, 15'); w.e(f's_add_u32 {s(sO2)}, {s(sO2)}, {WS_X1}')
    w.bar('BKV')
    for r in range(2): w.e(f'ds_read_b128 {v(QF[r],4)}, {v(vKa)} offset:{SL(S_Q)-SL(S_K)+4096*r}')
    def finish_o(r):
        w.e(f'v_rcp_f32 {v(tm)}, {v(O+8)}')
        for i in range(8): w.e(f'v_mul_f32 {v(O+i)}, {v(O+i)}, {v(tm)}')
        for p in range(4): w.e(f'v_cvt_pk_bf16_f32 {v(O+8+p)}, {v(O+2*p)}, {v(O+2*p+1)}')
        if r: w.e(f's_add_u32 {s(sO1)}, {s(sO1)}, {4*32768}')
        w.e(f'buffer_store_dwordx4 {v(O+8,4)}, {v(vL16)}, {s(R_WS,4)}, {s(sO1)} offen sc1', 'ost')
    xl = Filler()
    for g in range(8): act_loads(xl, sO2, 4096 * g, 4 * g)
    for r in range(2):
        q = v(QF[r], 4)
        kread = lambda dst, j: w.e(f'ds_read_b128 {v(dst,4)}, {v(vKa)} offset:{(4*r+j)*1024}')
        vread = lambda e, j, u: w.e(f'ds_read_b128 {v(VF+4*e,4)}, {v(vVa)} offset:{(4*r+j)*1024+512*u}')
        for j in (8, 0, 1, 2, 3, 4, 5, 6, 7): kread(KP + 4 * j, j)
        S1 = lambda dst, j: w.e(f'{MF} {v(dst,16)}, {v(KP+4*j,4)}, {q}, 0')
        def mxb(b, first=False):
            if first: w.e(f'v_max_f32 {v(mx)}, {v(b)}, {v(b+1)}')
            for p in range(1 if first else 0, 8): w.e(f'v_max3_f32 {v(mx)}, {v(mx)}, {v(b+2*p)}, {v(b+2*p+1)}')
        S1(M, 8); S1(SA, 0); S1(SB, 1); S1(SC, 2)
        if r == 1: finish_o(0)
        for i in range(16): w.e(f'v_cndmask_b32 {v(M+i)}, {v(SA+i)}, {v(M+i)}, {s(MK+2*i,2)}')
        S1(SA, 3); mxb(M, True); mxb(SB); S1(SB, 4); mxb(SC); S1(SC, 5); mxb(SA); S1(SA, 6); mxb(SB); S1(SB, 7)
        kread(KF + 4, 1); kread(KF, 2)
        mxb(SC); mxb(SA)
        if r == 0: w.wait_vm_tag('x1st'); w.bar('BP2')
        else: w.bar('BX1')
        vread(0, 8, 0); vread(1, 8, 1); vread(2, 0, 0); vread(3, 0, 1)
        mxb(SB)
        w.e(f'v_mov_b32 {v(tm)}, {v(mx)}'); w.e(f'v_permlane32_swap_b32 {v(mx)}, {v(tm)}'); w.e(f'v_max_f32 {v(mx)}, {v(mx)}, {v(tm)}')
        for p in range(8): w.e(f'v_pk_mul_f32 {v(NM+2*p,2)}, {v(mx,2)}, -1.0 op_sel_hi:[0,0]')
        for p in range(8): w.e(f'v_pk_add_f32 {v(M+2*p,2)}, {v(M+2*p,2)}, {v(NM,2)}')
        SBUF = lambda j: SA if j & 1 else SB
        S2 = lambda j: w.e(f'{MF} {v(SBUF(j),16)}, {v(KF+4*(j&1),4)}, {q}, {v(NM,16)}')
        PV = lambda e, p, first=False: w.e(f'{MF} {v(O,16)}, {v(VF+4*e,4)}, {v(p,4)}, {"0" if first else v(O,16)}')
        ex = lambda b, a, z: [w.e(f'v_exp_f32 {v(b+i)}, {v(b+i)}') for i in range(a, z)]
        cv = lambda b, a, z: [w.e(f'v_cvt_pk_bf16_f32 {v(PK+p)}, {v(b+2*p)}, {v(b+2*p+1)}') for p in range(a, z)]
        ld = (lambda n: xl.pull(w, n)) if r == 1 else (lambda n: None)
        S2(1); kread(KF + 4, 3)
        ld(8); ex(M, 0, 9); cv(M, 0, 4); ld(4)
        for p in range(4): w.e(f'v_and_b32 {v(PD+p)}, {v(PK+p)}, {v(MD+p)}')
        for p in range(4): w.e(f'v_bfi_b32 {v(PO+p)}, {v(MD+p)}, 0, {v(PK+p)}')
        PV(0, PD, True); ex(M, 9, 13); PV(2, PO); vread(2, 1, 0); ex(M, 13, 16); ld(4); cv(M, 4, 8)
        for p in range(4, 8): w.e(f'v_and_b32 {v(PD+p)}, {v(PK+p)}, {v(MD+p)}')
        for p in range(4, 8): w.e(f'v_bfi_b32 {v(PO+p)}, {v(MD+p)}, 0, {v(PK+p)}')
        PV(3, PO + 4); vread(3, 1, 1)
        pend = lambda: (PV(1, PD + 4), vread(0, 2, 0), vread(1, 2, 1))
        for j in range(1, 8):
            b = SBUF(j); e = 2 * (j & 1)
            ex(b, 0, 3); pend(); ex(b, 3, 6)
            if j < 7:
                S2(j + 1)
                if j + 3 < 8: kread(KF + 4 * ((j + 1) & 1), j + 3)
            ld(4); ex(b, 6, 9); cv(b, 0, 4); ex(b, 9, 11); PV(e, PK); ld(4); ex(b, 11, 16); ld(4 if j & 1 else 8); cv(b, 4, 8)
            def pend(j=j, e=e):
                PV(e + 1, PK + 4)
                if j + 2 < 8: vread(e, j + 2, 0); vread(e + 1, j + 2, 1)
        w.e('s_nop 1'); pend()

    T, CS4, AC = 32, 48, [64, 80]
    vCs = 13
    w.e(f'v_lshl_add_u32 {v(WA[0])}, {v(vH)}, 9, {v(vCom)}'); w.e(f'v_xor_b32 {v(WB[0])}, 64, {v(WA[0])}'); windows(WA); windows(WB)
    xl.flush(w)
    w.e(f's_lshl_b32 {s(sA)}, {s(sR4)}, 12'); w.e(f's_add_u32 {s(sA)}, {s(sA)}, {WS_STATS}')
    w.e('v_and_b32 v9, 31, v0'); w.e('v_lshlrev_b32 v9, 3, v9'); w.e(f'v_lshl_add_u32 v9, {v(vH)}, 11, v9')
    finish_o(1)
    for i in range(8): w.e(f'buffer_load_dwordx2 {v(CS4+2*i,2)}, v9, {s(R_WS,4)}, {s(sA)} offen offset:{256*i} sc1')
    w.e(f's_mul_i32 {s(sO1)}, {s(sR4)}, {112*1024}'); w.e(f's_lshl_b32 {s(sA)}, {s(sJ)}, 13'); w.e(f's_add_u32 {s(sO1)}, {s(sO1)}, {s(sA)}'); w.e(f's_add_u32 {s(sO1)}, {s(sO1)}, {WS_H3}')
    act_base(sO2, WS_O, 32768); w.e(f's_lshl_b32 {s(sA)}, {s(sC2)}, 12'); w.e(f's_add_u32 {s(sO2)}, {s(sO2)}, {s(sA)}')
    L = 5
    fill = Filler()
    def cs_reads(F, t):
        base = (CSA, CSB)[t >> 1] + 128 * t
        F.add(f'v_lshlrev_b32 {v(vCs)}, 4, {v(vH)}'); F.add(f'v_add_u32 {v(vCs)}, {base}, {v(vCs)}')
        for j in range(4): F.add(f'ds_read_b128 {v(CS4+4*j,4)}, {v(vCs)} offset:{32*j}', 4, 'cs')
    def h3_store(F, t, u):
        if u == 0: F.add(f's_add_u32 {s(sA)}, {s(sO1)}, {2048*t}')
        F.add(f'buffer_store_dwordx4 {v(PK+4*u,4)}, {v(vL16)}, {s(R_H3,4)}, {s(sA)} offen offset:{1024*u} sc1', 4, f'h3st{t >> 1}')
    def gelu_plain(F, t):
        acc = AC[t & 1]; K = 8
        for g in range(4):
            R = range(4 * g, 4 * g + 4); tt = lambda r: v(T + (r & 7))
            for r in R: F.add(f'v_fma_f32 {v(acc+r)}, {v(CS4+r)}, {v(K)}, {v(acc+r)}')
            for r in R: F.add(f'v_mul_f32 {tt(r)}, {v(acc+r)}, {v(acc+r)}')
            for r in R: F.add(f'v_fma_f32 {tt(r)}, {tt(r)}, {v(K+3)}, {v(K+2)}')
            for r in R: F.add(f'v_mul_f32 {tt(r)}, {tt(r)}, {v(acc+r)}')
            for r in R: F.add(f'v_exp_f32 {tt(r)}, {tt(r)}', 8)
            for r in R: F.add(f'v_fma_f32 {tt(r)}, {tt(r)}, {v(K+1)}, {v(K+1)}')
            for r in R: F.add(f'v_rcp_f32 {tt(r)}, {tt(r)}', 8)
            for r in R: F.add(f'v_mul_f32 {v(acc+r)}, {v(acc+r)}, {tt(r)}')
            for p in (2 * g, 2 * g + 1): F.add(f'v_cvt_pk_bf16_f32 {v(PK+p)}, {v(acc+2*p)}, {v(acc+2*p+1)}')
            if g & 1: h3_store(F, t, g >> 1)
    def stats():
        for i in range(1, 8):
            w.e(f'v_add_f32 {v(CS4)}, {v(CS4)}, {v(CS4+2*i)}'); w.e(f'v_add_f32 {v(CS4+1)}, {v(CS4+1)}, {v(CS4+2*i+1)}')
        ln_consts(CS4, CS4 + 1, 8)
    ol = Filler()
    for sl in range(4): act_loads(ol, sO2, sl * 8192, 4 * sl)
    steps = []
    for n in range(128):
        t, f = n >> 5, n & 31
        def rd(n=n, t=t, f=f):
            if n == 0: w.bar('BA')
            if t == 2 and f % 8 == 0:
                if f == 8: w.wait_lg_tag('cs')
                w.bar(f'BW{f // 8}')
            tr(WR + 4 * (n % L), (WA, WB)[t & 1], SL((S_W3A, S_W3B)[t >> 1][f >> 3]) + (f & 7) * 2048, 1024)
        def mm(n=n, t=t, f=f):
            w.e(f'{MF} {v(AC[t&1],16)}, {v(WR+4*(n%L),4)}, {v(X(f),4)}, {"0" if f == 0 else v(AC[t&1],16)}')
        st = dict(rd=rd, mm=mm)
        def post(t=t, f=f):
            if f == 31:
                fill.flush(w)
                if t == 0: stats(); w.wait_vm_tag('ost'); w.bar('BT1')
                if t == 2: w.bar('BT3')
                cs_reads(fill, t)
                if t < 3: fill.add('s_nop 1'); gelu_plain(fill, t)
            if t == 3 and f == 16: w.wait_vm_tag('h3st0'); w.bar('BT3b')
            if t == 3 and f >= 4 and f % 2 == 0: ol.pull(w, 6)
        st['post'] = post
        steps.append(st)
    run_steps(w, steps, L, fill, 22)
    fill.flush(w); ol.flush(w)
    splitk_bases()
    w.waitcnt(lg=0); w.bar('BE4')
    gelu_packed(AC[1], CS4, 8, PK)
    h3_store(fill, 3, 0); h3_store(fill, 3, 1); fill.flush(w)

    A0, A1, B0, B1, vG = 32, 48, 64, 80, 24
    w.e('v_and_b32 v9, 31, v0'); w.e('v_lshlrev_b32 v10, 2, v9'); w.e(f's_lshl_b32 {s(sA)}, {s(sRB)}, 7'); w.e(f's_add_u32 {s(sA)}, {s(sA)}, {WS_G}')
    w.e(f'buffer_load_dword {v(vG)}, v10, {s(R_WS,4)}, {s(sA)} offen sc1')
    act_base(sO2, WS_H3, 112 * 1024); w.e(f's_lshl_b32 {s(sA)}, {s(sC2)}, 13'); w.e(f's_add_u32 {s(sO2)}, {s(sO2)}, {s(sA)}')
    h3l = lambda i: act_loads(fill, sO2, (i % 7) * 16384 + (i // 7) * 4096, (16 + 4 * i) % 32)
    s5 = splitk_steps(S_WO, [f'BO{i}' for i in range(4)], 0, A0, A1, pre=lambda sl: w.wait_vm_tag('h3st1') if sl == 3 else None)
    s6 = splitk_steps(S_W4, [f'BF{i}' for i in range(14)], 16, B0, B1, n0=16)
    for k in range(LA6): s5[2 + 3 * k]['post'] = (lambda k=k: h3l(k))
    for i in range(14 - LA6): s6[4 * i]['post'] = (lambda i=i: h3l(i + LA6))
    def mixprep():
        fill.add(f'v_sub_f32 {v(vG+1)}, 1.0, {v(vG)}')
        for r in range(32): fill.add(f'v_mul_f32 {v(A0+r)}, {v(A0+r)}, {v(vG)}')
        for p in range(8):
            fill.add(f'v_lshlrev_b32 v10, 16, {v(XR+p)}'); fill.add(f'v_and_b32 v11, 0xffff0000, {v(XR+p)}')
            fill.add(f'v_fmac_f32 {v(A0+2*p)}, v10, {v(vG+1)}'); fill.add(f'v_fmac_f32 {v(A0+2*p+1)}, v11, {v(vG+1)}')
        fill.add(f'v_lshlrev_b32 v10, 10, v9'); fill.add(f'v_lshl_add_u32 v10, {v(vH)}, 4, v10')
        fill.add(f's_lshl_b32 {s(sO1)}, {s(sRB)}, 15'); fill.add(f's_lshl_b32 {s(sA)}, {s(sT2)}, 5'); fill.add(f's_add_u32 {s(sO1)}, {s(sO1)}, {s(sA)}')
    s6[41]['post'] = mixprep
    run_steps(w, s5 + s6, 3, fill, 24)
    fill.flush(w)
    g1 = v(vG, 2)
    for p in range(8): w.e(f'v_pk_fma_f32 {v(A1+2*p,2)}, {v(B1+2*p,2)}, {g1}, {v(A1+2*p,2)} op_sel:[0,1,0] op_sel_hi:[1,1,1]')
    def own():
        for p in range(8): w.e(f'v_pk_fma_f32 {v(A0+2*p,2)}, {v(B0+2*p,2)}, {g1}, {v(A0+2*p,2)} op_sel:[0,1,0] op_sel_hi:[1,1,1]')
    exchange(S_XF, A1, B1, 'BXF', own)
    for p in range(8): w.e(f'v_pk_add_f32 {v(A0+2*p,2)}, {v(A0+2*p,2)}, {v(B1+2*p,2)}')
    for p in range(8): w.e(f'v_cvt_pk_bf16_f32 {v(PK+p)}, {v(A0+2*p)}, {v(A0+2*p+1)}')
    for u in range(2):
        w.e(f'v_permlane32_swap_b32 {v(PK+4*u)}, {v(PK+4*u+2)}'); w.e(f'v_permlane32_swap_b32 {v(PK+4*u+1)}, {v(PK+4*u+3)}')
        w.e(f'buffer_store_dwordx4 {v(PK+4*u,4)}, v10, {s(R_OUT,4)}, {s(sO1)} offen offset:{32*u}')
    if DIAG: w.waitcnt(vm=0); w.bar('BEND')
    w.e('s_endpgm')
    return w

def main():
    out = sys.argv[1]
    pro = prologue()
    d, y, m, c = role_dma(pro), role_sync(pro), role_misc(pro), role_comp(pro)
    for r in (d, y, m, c):
        bars = [b for b in r.bars if b != 'BEND']
        assert bars == BARS, (r.name, [(a, b) for a, b in zip(bars, BARS) if a != b][:3], len(bars), len(BARS))
        print(r.name, 'instr', r.count, 'nop states', r.nops, file=sys.stderr)
    hdr = open('gated_mix__sliding_block__mixer_s_mlp__prompt.s.ref').read().split('; Override launch')[0]
    txt = hdr + f'''; One persistent launch: 256 workgroups (one per CU), 4 compute waves + 2 LDS-DMA waves + 1 hand-off wave + 1 helper wave.
; @launch grid=(256,1,1) block=(512,1,1) lds=163840
.amdgcn_target "amdgcn-amd-amdhsa--gfx950"
.text
.globl {NAME}
.p2align 8
.type {NAME},@function
{NAME}:
''' + '\n'.join(x.text() for x in (pro, d, m, y, c)) + f'''
Lend:
    s_endpgm
.section .rodata,"a"
.p2align 6
.amdhsa_kernel {NAME}
  .amdhsa_next_free_vgpr 256
  .amdhsa_next_free_sgpr 102
  .amdhsa_accum_offset 256
  .amdhsa_group_segment_fixed_size 0
  .amdhsa_kernarg_size 96
  .amdhsa_user_sgpr_count 2
  .amdhsa_user_sgpr_kernarg_segment_ptr 1
  .amdhsa_system_sgpr_workgroup_id_x 1
.end_amdhsa_kernel
'''
    open(out, 'w').write(txt)
    if DIAG: open(out + '.stamps', 'w').write(' '.join(m.stamps))
main()
```

```python
import sys, struct
from asmlib import *
from layout import *

DIAG = '--diag' in sys.argv
OPT = dict(touch=1, codepf=1, rt=0, nfl=24, stage=7, r3=1, hb=20, sleep=1, dprio=0, spin=0, x1=0, rq=2)
CST = []
for a in sys.argv[2:]:
    if a.startswith('cs:'): CST = a[3:].split(',')
    elif '=' in a: k_, v_ = a.split('='); assert k_ in OPT, k_; OPT[k_] = int(v_)
NAME = 'gated_mix__sliding_block__mixer_s_mlp__prompt_kernel'
def fl(x): return '0x%08x' % struct.unpack('<I', struct.pack('<f', x))[0]
LOG2E = 1.4426950408889634
C0 = -2.0 * LOG2E * 0.7978845608028654
C1 = C0 * 0.044715
SL = lambda i: i * 16384
SPIN = 400000
LSPIN = 4000000

P_X, P_WQKV, P_WO, P_W1, P_W2, P_W3, P_W4, P_GW, P_OUT, P_DBG, P_WS = 8, 10, 12, 16, 18, 20, 22, 24, 26, 28, 30
sX, sIDX, sCS, sR64, sRB128, sJ, sV4, sQB, sHD, sSP = 32, 33, 34, 35, 36, 37, 38, 99, 100, 101
R_WS = 72

MISC = SL(9)
FL = MISC; BLK = dict(C=0, D=1024 + 128, Y=1536, M=1792)
L_CS3 = MISC + 2048
L_HC = MISC + 2560
L_HK = MISC + 3072
L_Q = MISC + 8192
S_W2 = [2, 3, 4, 5]; S_K, S_V, S_ONE, S_XCH = 6, 7, 8, 0
S_W3A = [1, 2, 3, 4]; S_W3B = [5, 0, 6, 7]; S_WO = [8, 1, 2, 3]
S_W4 = [4, 5, 0, 6, 7, 8, 1, 2, 3, 4, 5, 0, 6, 7]
S_XF = 8
LA6 = 4
D_IDX = {f'f{t}': t + 1 for t in range(24)}
D_IDX.update({f'w30{i}': 25 + i for i in range(4)}); D_IDX.update({f'w31{i}': 29 + i for i in range(4)})
D_IDX.update({f'wo{i}': 33 + i for i in range(4)}); D_IDX.update({f'w4_{i}': 37 + i for i in range(14)})
EV = dict(C={}, D=D_IDX, Y=dict(h=1, kq=2, kvi=3, v=4, x1=5, o=6, a=7, b=8), M=dict(one=1, cs=2))
def ev(who, name): return EV[who].get(name, 63)

uid = [0]
def lab(p):
    uid[0] += 1
    return f'L{p}{uid[0]}'

def srd(w, r, ptr, nbytes):
    w.e(f's_mov_b32 {s(r)}, {s(ptr)}'); w.e(f's_and_b32 {s(r+1)}, {s(ptr+1)}, 0xffff')
    w.e(f's_mov_b32 {s(r+2)}, {nbytes}'); w.e(f's_mov_b32 {s(r+3)}, 0x20000')

def gpoll(w, base, off, target, dst, cached=False):
    a, d = lab('pc'), lab('pd')
    w.e(f's_mov_b32 {s(dst+1)}, {SPIN}')
    w.e(f's_load_dword {s(dst)}, {s(base,2)}, {off}{"" if cached else " glc"}')
    w.label(a)
    w._push(Ins('s_waitcnt lgkmcnt(0)')); w.sm = []; w.lg = []
    w.e(f's_cmp_ge_u32 {s(dst)}, {target}'); w.e(f's_cbranch_scc1 {d}')
    w.e(f's_sub_u32 {s(dst+1)}, {s(dst+1)}, 1'); w.e(f's_cbranch_scc1 {d}')
    if cached: w.e('s_sleep 32')
    w.e(f's_load_dword {s(dst)}, {s(base,2)}, {off} glc'); w.e(f's_branch {a}')
    w.label(d); w.sm = []

vChk, vMy, vOne, vF = 24, 25, 26, 27
def lwait(w, who, name, slow=None):
    a, d = lab('wa'), lab('wd')
    rd = lambda: (w._push(Ins(f'ds_read_b32 {v(vF)}, {v(vChk)} offset:{BLK[who]}')), w._push(Ins('s_waitcnt lgkmcnt(0)')),
                  w._push(Ins(f'v_cmp_gt_u32 vcc, {ev(who, name)}, {v(vF)}')), w._push(Ins(f's_cbranch_vccz {d}')))
    w.lg = []; w.sm = []
    if slow:
        rd(); slow()
    w.label(a); rd()
    if OPT['sleep']: w._push(Ins(f's_sleep {OPT["sleep"]}'))
    w._push(Ins(f's_sub_u32 {s(sSP)}, {s(sSP)}, 1')); w._push(Ins(f's_cbranch_scc0 {a}'))
    w._push(Ins(f's_mov_b32 {s(sSP)}, 0'))
    w.label(d)

def publish(w, n):
    w.e(f'v_mov_b32 {v(vOne)}, {n}'); w.e(f'ds_write_b32 {v(vMy)}, {v(vOne)}')

sTab, vZ = 4, 28
def table_base(w):
    w.e(f's_add_u32 {s(sTab)}, s4, Ltab-Lpc'); w.e(f's_addc_u32 {s(sTab+1)}, s5, 0'); w.e(f'v_mov_b32 {v(vZ)}, 0')
def publish_dma(w, n, blk, sreg=None):
    if sreg is None: w.e(f's_mov_b32 m0, {blk - 4 * n}')
    else: w.e(f's_add_u32 m0, {s(sreg)}, {blk - 4 * n}')
    w.e(f'global_load_lds_dword {v(vZ)}, {s(sTab,2)} offset:{4 * n}', 'flag')

class Stamps:
    def __init__(self, w, first, n, pref): self.w, self.first, self.n, self.names, self.pref = w, first, n, [], pref
    def __call__(self, name, force=False):
        if name in self.names:
            self.w._push(Ins(f's_memtime {s(self.first + 2 * self.names.index(name), 2)}')); return
        if DIAG and (force or any(name.startswith(p) for p in self.pref)) and len(self.names) < self.n:
            if OPT['spin'] and not force:
                self.w._push(Ins(f's_mov_b32 {s(self.first + 2 * len(self.names))}, {s(sSP)}')); self.names.append(name); return
            self.w._push(Ins(f'{"s_memrealtime" if OPT["rt"] or name.startswith("rt") else "s_memtime"} {s(self.first + 2 * len(self.names), 2)}')); self.names.append(name)
    def dump(self):
        if not DIAG: return
        w = self.w
        w._push(Ins('s_waitcnt lgkmcnt(0)'))
        for i in range(len(self.names)): w.e(f'v_writelane_b32 v2, {s(self.first+2*i)}, {i}')
        w.e('v_mbcnt_lo_u32_b32 v1, -1, 0'); w.e('v_lshlrev_b32 v1, 2, v1'); w.e('s_lshl_b32 s6, s2, 9'); w.e('s_lshl_b32 s7, s3, 6'); w.e('s_add_u32 s6, s6, s7'); w.e(f's_add_u32 s6, s6, {WS_DIAG}')
        w.e('s_mov_b64 exec, 0xffff'); w.e(f'buffer_store_dword v2, v1, {s(R_WS,4)}, s6 offen')

def prologue():
    w = Wave('pro')
    w.e('s_cmp_ge_u32 s2, 256'); w.e('s_cbranch_scc1 Lend')
    w.e('s_load_dwordx16 s[8:23], s[0:1], 0'); w.e('s_load_dwordx8 s[24:31], s[0:1], 64')
    w.e('s_getpc_b64 s[4:5]'); w.label('Lpc')
    w.e('v_readfirstlane_b32 s3, v0'); w.e(f'v_lshlrev_b32 {v(vMy)}, 2, v0'); w.e('v_and_b32 v0, 63, v0')
    w.e(f's_lshr_b32 {s(sIDX)}, s2, 3'); w.e('s_lshr_b32 s3, s3, 6')
    if OPT['codepf']:
        w.e(f's_lshl_b32 s6, {s(sIDX)}, 3'); w.e('s_add_u32 s6, s6, s3'); w.e('s_lshl_b32 s6, s6, 8')
        w.e('v_lshl_add_u32 v1, v0, 7, s6'); w.e('v_cmp_gt_u32 vcc, Lend-Lpc, v1'); w.e('s_and_b64 exec, vcc, 3')
        sk = lab('cp'); w.e(f's_cbranch_execz {sk}'); w.e('global_load_dword v255, v1, s[4:5]'); w.label(sk); w.e('s_mov_b64 exec, -1')
    w.e(f'v_add_u32 {v(vMy)}, {FL}, {v(vMy)}'); w.e(f'v_mov_b32 {v(vOne)}, 0'); w.e(f'ds_write_b32 {v(vMy)}, {v(vOne)}')
    w.e(f's_and_b32 {s(sX)}, s2, 7'); w.e(f's_and_b32 {s(sCS)}, {s(sIDX)}, 3'); w.e('s_and_b32 s6, s2, 1'); w.e('s_lshl_b32 s6, s6, 2'); w.e(f's_add_u32 {s(sCS)}, {s(sCS)}, s6')
    w.e(f's_lshr_b32 s6, {s(sIDX)}, 2'); w.e(f's_and_b32 {s(sR64)}, s2, 6'); w.e(f's_lshl_b32 {s(sR64)}, {s(sR64)}, 2'); w.e(f's_add_u32 {s(sR64)}, {s(sR64)}, s6')
    w.e(f'v_lshlrev_b32 {v(vChk)}, 2, v0'); w.e(f'v_add_u32 {v(vChk)}, {FL}, {v(vChk)}'); w.e(f's_mov_b32 {s(sSP)}, {LSPIN}')
    w.e('s_and_b32 s6, s3, 6'); w.e('s_cmp_eq_u32 s6, 4'); w.e('s_cbranch_scc1 Ldma')
    w._push(Ins('s_waitcnt lgkmcnt(0)')); w._push(Ins('s_barrier'))
    w.e('s_cmp_eq_u32 s3, 7'); w.e('s_cbranch_scc1 Lmisc')
    w.e('s_cmp_eq_u32 s3, 6'); w.e('s_cbranch_scc1 Lsync')
    w.e('s_branch Lcomp')
    return w

def fork(pro, name, label):
    w = Wave(name); w.vm = list(pro.vm); w.sm = list(pro.sm); w.lg = list(pro.lg); w.hist = list(pro.hist)
    if name != 'dma': w.sm = []; w.lg = []
    w.label(label)
    return w

def p4_ids(w):
    w.e(f's_cmp_lt_u32 {s(sIDX)}, 28'); w.e(f's_cselect_b32 {s(sV4)}, 1, 0'); w.e('s_cselect_b32 s6, 0, 4')
    w.e(f's_sub_u32 {s(sJ)}, {s(sIDX)}, s6')
    w.e(f's_mul_i32 s6, {s(sJ)}, 37'); w.e('s_lshr_b32 s6, s6, 8'); w.e('s_mul_i32 s7, s6, 7'); w.e(f's_sub_u32 {s(sJ)}, {s(sJ)}, s7')
    w.e(f's_and_b32 {s(sRB128)}, s2, 6'); w.e(f's_lshl_b32 {s(sRB128)}, {s(sRB128)}, 1'); w.e(f's_add_u32 {s(sRB128)}, {s(sRB128)}, s6')
    w.e('s_and_b32 s6, s2, 1'); w.e('s_mul_i32 s6, s6, 7'); w.e(f's_add_u32 {s(sJ)}, {s(sJ)}, s6')
    w.e(f's_and_b32 {s(sQB)}, {s(sIDX)}, 7'); w.e(f's_lshr_b32 s6, {s(sIDX)}, 3'); w.e(f's_lshl_b32 {s(sHD)}, {s(sX)}, 2'); w.e(f's_add_u32 {s(sHD)}, {s(sHD)}, s6')

def role_dma(pro):
    w = fork(pro, 'dma', 'Ldma')
    st = Stamps(w, 8, 12, CST); w.st = st
    R_X, R_W1, R_QKV, R_W2, R_W3, R_WO, R_W4 = 40, 44, 48, 52, 56, 60, 64
    sD, sM0, sOff, sXb, sCol, sCol3, sT = 84, 85, 86, 87, 88, 89, 90
    vXo, vW1k, vW3k, vW35, vA, vB, vC = 4, 8, 12, 16, 20, 21, 22
    vLin = [1, 2, 3]
    if OPT['dprio']: w.e(f's_setprio {OPT["dprio"]}')
    w.e(f's_sub_u32 {s(sD)}, s3, 4'); w.e(f's_lshl_b32 {s(sM0)}, {s(sD)}, 12')
    w.e(f'v_lshrrev_b32 {v(vA)}, 3, v0'); w.e(f's_lshl_b32 {s(sT)}, {s(sD)}, 5'); w.e(f'v_add_u32 {v(vA)}, {s(sT)}, {v(vA)}')
    w.e(f'v_and_b32 {v(vB)}, 7, v0')
    w.e(f'v_lshrrev_b32 {v(vC)}, 4, v0'); w.e(f'v_xor_b32 {v(vC)}, {v(vC)}, {v(vB)}'); w.e(f'v_lshlrev_b32 {v(vC)}, 4, {v(vC)}')
    w.e(f'v_lshl_add_u32 {v(vXo)}, {v(vA)}, 10, {v(vC)}'); w.e(f'v_xor_b32 {v(vXo+1)}, 64, {v(vXo)}'); w.e(f'v_add_u32 {v(vXo+1)}, 7168, {v(vXo+1)}')
    w.e(f'v_add_u32 {v(vXo+2)}, 14336, {v(vXo)}'); w.e(f'v_add_u32 {v(vXo+3)}, 14336, {v(vXo+1)}')
    w.e(f'v_bfe_u32 {v(vC)}, v0, 4, 1'); w.e(f'v_lshlrev_b32 {v(vC)}, 2, {v(vC)}'); w.e(f'v_xor_b32 {v(vC)}, {v(vC)}, {v(vB)}'); w.e(f'v_lshlrev_b32 {v(vC)}, 4, {v(vC)}')
    def voffs(r, pitch):
        w.e(f'v_mul_u32_u24 {v(r)}, {pitch}, {v(vA)}'); w.e(f'v_add_u32 {v(r)}, {v(r)}, {v(vC)}')
        for i in range(1, 4): w.e(f'v_add_u32 {v(r+i)}, {i * (8 * pitch - 1024)}, {v(r)}')
    voffs(vW1k, 1024)
    w.e(f's_lshl_b32 {s(sXb)}, {s(sR64)}, 16'); w.e(f's_lshl_b32 {s(sCol)}, {s(sCS)}, 7')
    N = [64]; sFl = 91
    table_base(w); w.e(f's_lshl_b32 {s(sFl)}, {s(sD)}, 8')
    w.waitcnt(lg=0); w.bar('init')
    srd(w, R_X, P_X, 2 * MB); srd(w, R_W1, P_W1, 512 * KB)
    def pace(): w.waitcnt(vm=N[0] - 4)
    def done(tag): publish_dma(w, D_IDX[tag], FL + 1024, sFl)
    def req(who, name): lwait(w, who, name)
    def ld(voff, r, base, add, lds, tag, reg=None):
        if reg is None: w.e(f's_add_u32 m0, {s(sM0)}, {lds}')
        w.e(f's_add_u32 {s(sOff)}, {s(base)}, {add}')
        pace()
        for i in range(4):
            if reg is None: w.e(f'buffer_load_dwordx4 {v(voff+i)}, {s(r,4)}, {s(sOff)} offen offset:{1024*i} lds', tag)
            else: w.e(f'buffer_load_dwordx4 {v(reg+4*i,4)}, {v(voff+i)}, {s(r,4)}, {s(sOff)} offen offset:{1024*i}', tag)
    def fill_h(c):
        ld(vXo, R_X, sXb, c * 128, SL(c), f'f{c}')
        ld(vW1k, R_W1, sCol, 64 * c * 1024, SL(c) + 8192, f'f{c}')
        done(f'f{c}')
    def fill_w(tag, slot, voff, r, base, col, pitch, rows, reg=None):
        for n in range(2): ld(voff, r, base, col + rows(n) * pitch, SL(slot) + n * 8192, tag, None if reg is None else reg + 16 * n)
        if reg is None: done(tag)
    def fill(t):
        if t < 8: fill_h(t)
        elif t < 20:
            if t == 9:
                w.e(f's_add_u32 {s(sT)}, {s(sXb)}, {s(sCol)}'); ld(vXo, R_X, sT, 0, L_Q, 'f9')
            fill_w(f'f{t}', t % 9, vW3k, R_QKV, sCol, ((t - 8) // 4) * 1024, 3072, lambda n: 128 * ((t - 8) % 4) + 64 * n)
        else: fill_w(f'f{t}', S_W2[t - 20], vW1k, R_W2, sCol, 0, 1024, lambda n: 128 * (t - 20) + 64 * n)
    for t in range(3): fill(t)
    voffs(vW3k, 3072); voffs(vW35, 3584)
    srd(w, R_QKV, P_WQKV, 1536 * KB); srd(w, R_W2, P_W2, 512 * KB); srd(w, R_W3, P_W3, 1792 * KB)
    srd(w, R_WO, P_WO, 512 * KB); srd(w, R_W4, P_W4, 1792 * KB)
    if DIAG: srd(w, R_WS, P_WS, WS_END)
    p4_ids(w); w.e(f's_lshl_b32 {s(sCol3)}, {s(sJ)}, 8')
    w.e(f'v_lshl_add_u32 {v(vLin[0])}, v0, 4, {s(sM0)}'); w.e(f'v_add_u32 {v(vLin[1])}, 0x10000, {v(vLin[0])}'); w.e(f'v_add_u32 {v(vLin[2])}, 0x20000, {v(vLin[0])}')
    w.e(f'v_add_u32 {v(vMy)}, {s(sFl)}, {v(vChk)}'); w.e(f'v_add_u32 {v(vMy)}, 1024, {v(vMy)}')
    N[0] = OPT['nfl']
    for t in range(3, 24):
        if t in (9, 13, 17, 21): req('C', {9: 'c3', 13: 'hx', 17: 'c11', 21: 'hdr'}[t])
        fill(t); st(f'df{t:02d}')
    st('d_w2')
    w3 = lambda p, i: fill_w(f'w3{p}{i}', (S_W3A, S_W3B)[p][i], vW35, R_W3, sCol3, 128 * p, 3584, lambda n: 128 * i + 64 * n)
    wo = lambda i: fill_w(f'wo{i}', S_WO[i], vW1k, R_WO, sCol, 0, 1024, lambda n: 128 * i + 64 * n)
    STG = lambda i: 32 + 32 * (i - 1)
    def w4(i, staged=False): fill_w(f'w4_{i}', S_W4[i], vW1k, R_W4, sCol, 0, 1024,
                                    lambda n: 128 * (2 * (i % 7) + n) + 64 * (i // 7), STG(i) if staged else None)
    def unstage(i):
        for n in range(8):
            a = SL(S_W4[i]) + (n >> 2) * 8192 + (n & 3) * 1024
            w.e(f'ds_write_b128 {v(vLin[a >> 16])}, {v(STG(i) + 4 * n, 4)} offset:{a & 0xffff}')
        w.wait_vm_tag('flag'); publish(w, D_IDX[f'w4_{i}'])
    NS = OPT['stage']
    sk = lab('sp')
    w.e(f's_cmp_eq_u32 {s(sV4)}, 0'); w.e(f's_cbranch_scc1 {sk}')
    req('C', 'hl'); w3(0, 0)
    req('C', 'x2w'); req('Y', 'kvi'); w3(0, 1); w3(0, 2); w3(0, 3); w3(1, 0)
    req('C', 'x1dr'); w3(1, 1)
    req('C', 'att'); w3(1, 2); w3(1, 3)
    w.label(sk)
    req('C', 'att'); wo(0)
    st('d_wo0')
    for i in range(1, min(NS, 3) + 1): w4(i, True)
    req('C', 'p4a'); wo(1); wo(2); wo(3); w4(0)
    for i in range(4, NS + 1): w4(i, True)
    st('d_stg')
    free = ['p4b'] * 4 + ['o1', 'o1', 'o3', 'o3', 'g1', 'g1', 'g3', 'g3', 'g5']
    for i in range(1, 14):
        if i == 1 or free[i - 1] != free[i - 2]: req('C', free[i - 1])
        if i <= NS: unstage(i)
        else: w.waitcnt(lg=0); w4(i)
    w.waitcnt(vm=0)
    st('d_end'); st.dump()
    w.e('s_endpgm')
    return w

def role_sync(pro):
    w = fork(pro, 'sync', 'Lsync')
    st = Stamps(w, 76, 12, CST); w.st = st
    srd(w, R_WS, P_WS, WS_END)
    sk = lab('nz'); sOne = 60
    w.e('s_cmp_ge_u32 s2, 4'); w.e(f's_cbranch_scc1 {sk}')
    w.e('v_lshlrev_b32 v1, 4, v0'); w.e(f's_mov_b32 {s(sOne)}, 1')
    for i in range(4): w.e(f'v_mov_b32 {v(4+i)}, 0')
    w.e('s_lshl_b32 s7, s2, 13'); w.e('s_add_u32 s6, s7, 4096')
    for i in range(8): w.e(f'buffer_store_dwordx4 v[4:7], v1, {s(R_WS,4)}, {"s6" if i >= 4 else "s7"} offen offset:{(i & 3) * 1024} sc1')
    w.waitcnt(vm=0)
    w.e(f's_atomic_add {s(sOne)}, {s(P_DBG,2)}, 0')
    w.label(sk)
    bM, sKlo, sKhi, sStep, sT, sOff, bA, b4 = 40, 42, 43, 44, 45, 46, 48, 50
    vLin, vVlo, vKlo = 1, 2, 8
    p4_ids(w)
    w.e(f'v_add_u32 {v(vMy)}, {BLK["Y"]}, {v(vChk)}'); table_base(w)
    for dst, hi, sh, lo in ((bM, sR64, 2, sCS), (bA, sQB, 4, sHD), (b4, sRB128, 3, sJ)):
        w.e(f's_lshr_b32 s6, {s(lo)}, 1'); w.e(f's_lshl_b32 s7, {s(hi)}, {sh}'); w.e('s_add_u32 s6, s6, s7'); w.e('s_lshl_b32 s6, s6, 7')
        w.e(f's_add_u32 {s(dst)}, {s(P_WS)}, s6'); w.e(f's_addc_u32 {s(dst+1)}, {s(P_WS+1)}, 0')
    w.e(f'v_lshlrev_b32 {v(vLin)}, 4, v0')
    w.e('v_lshrrev_b32 v3, 5, v0'); w.e('v_lshlrev_b32 v3, 9, v3'); w.e(f'v_mov_b32 {v(vVlo)}, 0x40000000'); w.e(f'v_add_u32 v12, 4096, {v(vLin)}')
    w.e(f's_cmp_eq_u32 {s(sQB)}, 0'); w.e('s_cselect_b64 vcc, -1, 0'); w.e(f's_cselect_b32 {s(sStep)}, 0, 4096'); w.e(f's_cselect_b32 {s(sT)}, 0, 8192')
    for i in range(4): w.e(f'v_add_u32 {v(vKlo+i)}, {4096 - 1024 * i}, v3'); w.e(f'v_cndmask_b32 {v(vKlo+i)}, v12, {v(vKlo+i)}, vcc')
    w.e(f'v_cndmask_b32 {v(vVlo)}, v12, {v(vVlo)}, vcc')
    w.e(f's_lshl_b32 {s(sKhi)}, {s(sHD)}, 16'); w.e(f's_lshl_b32 {s(sKlo)}, {s(sQB)}, 13'); w.e(f's_add_u32 {s(sKhi)}, {s(sKhi)}, {s(sKlo)}')
    w.e(f's_sub_u32 {s(sKlo)}, {s(sKhi)}, {s(sT)}')
    if OPT['dprio']: w.e(f's_setprio {OPT["dprio"]}')
    lwait(w, 'C', 'hdr')
    gpoll(w, P_DBG, 0, 4, 64, True)
    gpoll(w, bM, 16, 16, 64); publish(w, ev('Y', 'h')); st('y_h')
    gpoll(w, bA, 0, 8, 64); st('y_qk')
    lwait(w, 'C', 'vdone')
    def lin(wsoff, lds, tag):
        for g in range(2):
            w.e(f's_mov_b32 m0, {lds + 4096 * g}'); w.e(f's_add_u32 {s(sOff)}, {s(sKhi)}, {wsoff + 4096 * g}')
            for i in range(4): w.e(f'buffer_load_dwordx4 {v(vLin)}, {s(R_WS,4)}, {s(sOff)} offen offset:{1024 * i} sc1 lds', tag)
    def low(wsoff, lds, vlo, tag):
        w.e(f's_add_u32 {s(sOff)}, {s(sKlo)}, {wsoff - 4096}')
        for g in range(2):
            w.e(f's_mov_b32 m0, {lds + 4096 * g}')
            if g: w.e(f's_add_u32 {s(sOff)}, {s(sOff)}, {s(sStep)}')
            for i in range(4): w.e(f'buffer_load_dwordx4 {v(vlo(i))}, {s(R_WS,4)}, {s(sOff)} offen offset:{1024 * i} sc1 lds', tag)
    lin(WS_Q, L_Q, 'kq'); low(WS_K, SL(S_K), lambda i: vKlo + i, 'kq')
    lin(WS_K, SL(S_K) + 8192, 'kq'); publish_dma(w, ev('Y', 'kq'), FL + BLK['Y']); st('y_ki')
    gpoll(w, bA, 24, 8, 64); st('y_kv')
    low(WS_V, SL(S_V), lambda i: vVlo, 'v'); publish_dma(w, ev('Y', 'kvi'), FL + BLK['Y'])
    lin(WS_V, SL(S_V) + 8192, 'v'); publish_dma(w, ev('Y', 'v'), FL + BLK['Y'])
    w.waitcnt(vm=0); st('y_kw')
    gpoll(w, b4, 4, 16, 64); publish(w, ev('Y', 'x1')); st('y_x1')
    gpoll(w, bM, 20, 32, 64); publish(w, ev('Y', 'o')); st('y_o')
    gpoll(w, bM, 8, 14, 64); publish(w, ev('Y', 'a')); st('y_a')
    gpoll(w, bM, 12, 14, 64); publish(w, ev('Y', 'b')); st('y_b')
    st.dump()
    w.e('s_endpgm')
    return w

def role_misc(pro):
    w = fork(pro, 'misc', 'Lmisc')
    st = Stamps(w, 76, 12, CST); w.st = st
    R_T, R_X, R_G, R_W3, R_W4 = 40, 44, 48, 52, 44
    XG, GG, WG_, ACC = 32, 64, 96, 128
    sC = 59
    w.e('s_and_b32 s6, s2, 1'); w.e('s_lshl_b32 s6, s6, 9'); w.e('v_lshrrev_b32 v1, 2, v0'); w.e('v_lshl_add_u32 v1, v1, 10, s6'); w.e('v_and_b32 v2, 3, v0'); w.e('v_lshl_add_u32 v1, v2, 7, v1')
    w.e('v_lshrrev_b32 v2, 3, v0'); w.e('v_and_b32 v3, 7, v0'); w.e('v_lshlrev_b32 v3, 4, v3')
    w.e('v_lshl_add_u32 v4, v2, 10, v3'); w.e('v_mul_u32_u24 v5, 3584, v2'); w.e('v_add_u32 v5, v5, v3')
    def pick(cmp_, pa, na, pb, nb):
        w.e(cmp_); w.e(f's_cselect_b32 {s(R_T)}, {s(pa)}, {s(pb)}'); w.e(f's_cselect_b32 {s(R_T+1)}, {s(pa+1)}, {s(pb+1)}')
        w.e(f's_mov_b32 s7, {nb}'); w.e(f's_cselect_b32 {s(R_T+2)}, {na}, s7')
    w.e(f's_mov_b32 {s(R_T+3)}, 0x20000')
    w.e('s_and_b32 s6, s2, 6'); w.e('s_lshl_b32 s6, s6, 4'); w.e(f's_add_u32 {s(sC)}, s6, {s(sIDX)}')
    w.e('s_bitcmp1_b32 s2, 0'); w.e('s_cselect_b32 s58, 0x40000000, 0')
    if OPT['r3']:
        w.e('v_lshlrev_b32 v10, 10, v0'); w.e('v_add_u32 v10, 384, v10')
        pick(f's_cmp_lt_u32 {s(sIDX)}, 8', P_W1, 512 * KB, P_WQKV, 1536 * KB); w.e('s_cselect_b32 s6, 0, 8')
        w.e(f's_and_b32 {s(R_T+1)}, {s(R_T+1)}, 0xffff'); w.e(f's_sub_u32 s6, {s(sIDX)}, s6'); w.e('s_lshl_b32 s6, s6, 16'); w.e('s_add_u32 s6, s6, s58')
        w.e(f'buffer_load_dword v251, v10, {s(R_T,4)}, s6 offen')
    srd(w, R_X, P_X, 2 * MB); srd(w, R_G, P_GW, 1024)
    w.e(f's_lshl_b32 s6, {s(sR64)}, 3'); w.e(f's_add_u32 s60, s6, {s(sCS)}'); w.e('s_lshl_b32 s6, s60, 13')
    for i in range(8): w.e(f'buffer_load_dwordx4 {v(XG+4*i,4)}, v4, {s(R_X,4)}, s6 offen offset:{128*i}')
    if OPT['touch']:
        pick(f's_cmp_lt_u32 {s(sC)}, 32', P_W1, 512 * KB, P_WQKV, 1536 * KB); w.e('s_cselect_b32 s6, 0, 32')
        w.e(f's_and_b32 {s(R_T+1)}, {s(R_T+1)}, 0xffff'); w.e(f's_sub_u32 s6, {s(sC)}, s6'); w.e('s_lshl_b32 s6, s6, 14')
        w.e(f'buffer_load_dword v254, v1, {s(R_T,4)}, s6 offen')
    for i in range(8): w.e(f'buffer_load_dwordx4 {v(GG+4*i,4)}, v3, {s(R_G,4)}, 0 offen offset:{128*i}')
    srd(w, R_W3, P_W3, 1792 * KB); srd(w, R_W4, P_W4, 1792 * KB); srd(w, R_WS, P_WS, WS_END)
    p4_ids(w)
    w.e(f'v_add_u32 {v(vMy)}, {BLK["M"]}, {v(vChk)}')
    w.e(f's_mul_i32 s61, {s(sC)}, 4682'); w.e('s_lshr_b32 s61, s61, 16'); w.e('s_mul_i32 s6, s61, 14'); w.e(f's_sub_u32 s62, {s(sC)}, s6')
    w.e('s_and_b32 s6, s2, 1'); w.e('s_mul_i32 s6, s6, 14'); w.e('s_add_u32 s62, s62, s6')
    w.e('v_mov_b32 v6, 0'); w.e('v_mov_b32 v7, 0')
    for i in range(32): w.e(f'v_dot2c_f32_bf16 {v(6 + (i & 1))}, {v(XG+i)}, {v(GG+i)}')
    w.e('v_add_f32 v6, v6, v7')
    for m in ('quad_perm:[1,0,3,2]', 'quad_perm:[2,3,0,1]', 'row_half_mirror'):
        w.e(f'v_add_f32_dpp v6, v6, v6 {m} row_mask:0xf bank_mask:0xf')
    w.e(f'v_mul_f32 v6, {fl(-LOG2E)}, v6'); w.e('v_exp_f32 v6, v6'); w.e('v_add_f32 v6, 1.0, v6'); w.e('v_rcp_f32 v6, v6')
    w.e('v_lshlrev_b32 v7, 2, v2'); w.e('s_lshl_b32 s6, s60, 5'); w.e(f's_add_u32 s6, s6, {WS_G}')
    w.e('s_mov_b32 s7, 0x01010101'); w.e('s_mov_b32 exec_lo, s7'); w.e('s_mov_b32 exec_hi, s7')
    w.e(f'buffer_store_dword v6, v7, {s(R_WS,4)}, s6 offen sc1')
    w.e('s_mov_b64 exec, -1')
    sOne, bH0, bH1, bQ0, bQ1, bX, bO, bH3, sR2 = 63, 8, 10, 14, 16, 64, 66, 68, 70
    def base(dst):
        w.e('s_lshl_b32 s6, s6, 7'); w.e(f's_add_u32 {s(dst)}, {s(P_WS)}, s6'); w.e(f's_addc_u32 {s(dst+1)}, {s(P_WS+1)}, 0')
    w.e(f's_mov_b32 {s(sOne)}, 1')
    w.e(f's_lshl_b32 s6, {s(sR64)}, 2'); base(bH0)
    w.e(f's_bitcmp1_b32 {s(sCS)}, 1'); w.e('s_cselect_b32 s6, 31, 1'); w.e(f's_add_u32 s6, s6, {s(sR64)}'); w.e('s_and_b32 s6, s6, 31'); w.e('s_lshl_b32 s6, s6, 2'); base(bH1)
    w.e(f's_lshr_b32 s7, {s(sR64)}, 2'); w.e('s_lshl_b32 s7, s7, 4'); w.e(f's_lshl_b32 s39, {s(sCS)}, 1'); w.e('s_add_u32 s6, s7, s39'); base(bQ0)
    w.e('s_add_u32 s6, s7, 16'); w.e('s_and_b32 s6, s6, 0x70'); w.e('s_add_u32 s6, s6, s39'); base(bQ1)
    w.e(f's_lshr_b32 s6, {s(sR64)}, 1'); w.e('s_lshl_b32 s6, s6, 3'); base(bX)
    w.e(f's_lshl_b32 s6, {s(sQB)}, 4'); base(bO)
    w.e(f's_lshl_b32 s6, {s(sRB128)}, 3'); base(bH3)
    def mail(b, n, dw, val=sOne, n0=0):
        for i in range(n0, n0 + n): w.e(f's_atomic_add {s(val)}, {s(b,2)}, {128*i + 4*dw}')
    lwait(w, 'D', 'f2')
    w.e(f's_mul_i32 s6, s61, {64*3584}'); w.e('s_lshl_b32 s7, s62, 7'); w.e('s_add_u32 s6, s6, s7')
    for i in range(8):
        w.e(f'buffer_load_dwordx4 {v(WG_+4*i,4)}, v5, {s(R_W3,4)}, s6 offen')
        if i < 7: w.e(f's_add_u32 s6, s6, {8*3584}')
    for i in range(8):
        for d in range(4):
            src = WG_ + 4 * i + d
            if i == 0:
                w.e(f'v_lshlrev_b32 {v(ACC+2*d)}, 16, {v(src)}'); w.e(f'v_and_b32 {v(ACC+2*d+1)}, 0xffff0000, {v(src)}')
            else:
                w.e(f'v_lshlrev_b32 v8, 16, {v(src)}'); w.e(f'v_and_b32 v9, 0xffff0000, {v(src)}')
                w.e(f'v_add_f32 {v(ACC+2*d)}, {v(ACC+2*d)}, v8'); w.e(f'v_add_f32 {v(ACC+2*d+1)}, {v(ACC+2*d+1)}, v9')
    if OPT['touch']:
        pick(f's_cmp_lt_u32 {s(sC)}, 32', P_W2, 512 * KB, P_WO, 512 * KB); w.e('s_cselect_b32 s6, 0, 32')
        pick(f's_cmp_lt_u32 {s(sC)}, 64', R_T, 512 * KB, P_W4, 1792 * KB); w.e('s_cselect_b32 s6, s6, 64')
        w.e(f's_and_b32 {s(R_T+1)}, {s(R_T+1)}, 0xffff'); w.e(f's_sub_u32 s6, {s(sC)}, s6'); w.e('s_lshl_b32 s6, s6, 14')
        w.e(f'buffer_load_dword v253, v1, {s(R_T,4)}, s6 offen')
    for c in range(8): w.e(f'v_add_f32_dpp {v(ACC+c)}, {v(ACC+c)}, {v(ACC+c)} row_ror:8 row_mask:0xf bank_mask:0xf')
    for op in ('v_permlane16_swap_b32', 'v_permlane32_swap_b32'):
        for c in range(8): w.e(f'v_mov_b32 {v(ACC+8+c)}, {v(ACC+c)}')
        for c in range(8): w.e(f'{op} {v(ACC+c)}, {v(ACC+8+c)}')
        for c in range(8): w.e(f'v_add_f32 {v(ACC+c)}, {v(ACC+c)}, {v(ACC+8+c)}')
    w.e('v_lshlrev_b32 v7, 5, v0'); w.e('s_mul_i32 s6, s61, 7168'); w.e('s_lshl_b32 s7, s62, 8'); w.e('s_add_u32 s6, s6, s7'); w.e(f's_add_u32 s6, s6, {WS_CSP}')
    w.e(f's_cmp_lt_u32 {s(sC)}, 112'); w.e('s_cselect_b32 s71, 1, 0'); w.e(f's_cselect_b32 s6, s6, {0x40000000}')
    w.e('s_mov_b64 exec, 0xff')
    w.e(f'buffer_store_dwordx4 {v(ACC,4)}, v7, {s(R_WS,4)}, s6 offen sc1'); w.e(f'buffer_store_dwordx4 {v(ACC+4,4)}, v7, {s(R_WS,4)}, s6 offen offset:16 sc1')
    w.e('s_mov_b64 exec, -1')
    w.waitcnt(vm=0)
    if OPT['touch']:
        w.e(f's_add_u32 s6, {s(sC)}, 64'); w.e('s_lshl_b32 s6, s6, 14')
        w.e(f'buffer_load_dword v252, v1, {s(R_W4,4)}, s6 offen')
    gpoll(w, P_DBG, 0, 4, 4, True)
    w.e('s_lshr_b32 s6, s62, 1'); w.e('s_lshl_b32 s6, s6, 7'); w.e(f's_add_u32 s6, s6, {CNT_CS}')
    w.e(f's_atomic_add s71, {s(P_WS,2)}, s6')
    st('m_cs')
    if OPT['dprio']: w.e(f's_setprio {OPT["dprio"]}')
    if OPT['r3']:
        srd(w, R_T, P_W2, 512 * KB); w.e(f's_lshl_b32 s6, {s(sIDX)}, 14'); w.e('s_add_u32 s6, s6, s58')
        w.e('s_bitcmp1_b32 s2, 0'); w.e('s_mov_b32 s7, 0x4410'); w.e('s_cselect_b32 s7, 0x6532, s7')
        w.e('v_and_b32 v8, 3, v0'); w.e('v_lshlrev_b32 v8, 2, v8'); w.e('v_bfe_u32 v8, s7, v8, 4'); w.e('v_lshrrev_b32 v9, 2, v0')
        w.e('v_mul_u32_u24 v9, 7168, v9'); w.e('v_lshl_add_u32 v8, v8, 10, v9'); w.e(f's_mul_i32 s7, {s(sIDX)}, {8*7168}')
        w.e('s_mov_b64 exec, 0xffff'); w.e(f'buffer_load_dword v251, v10, {s(R_T,4)}, s6 offen')
        w.e('s_mov_b32 exec_lo, -1'); w.e(f'buffer_load_dword v250, v8, {s(R_W3,4)}, s7 offen offset:384'); w.e('s_mov_b64 exec, -1')
    lwait(w, 'C', 'hdr'); mail(bH0, 4, 4); mail(bH1, 4, 4); st('m_h')
    w.e('v_lshrrev_b32 v7, 4, v0'); w.e('v_lshlrev_b32 v7, 9, v7'); w.e('v_and_b32 v8, 15, v0'); w.e('v_lshl_add_u32 v7, v8, 4, v7'); w.e(f'v_add_u32 v7, {SL(S_ONE)}, v7')
    w.e(f's_cmp_eq_u32 {s(sQB)}, 0'); w.e('s_cselect_b32 s6, 0, 0x3f803f80')
    for i in range(4): w.e(f'v_mov_b32 {v(12+i)}, s6'); w.e(f'v_mov_b32 {v(16+i)}, 0x3f803f80')
    lwait(w, 'C', 'vdone'); mail(bQ0, 2, 0); mail(bQ1, 2, 0); st('m_q')
    lwait(w, 'C', 'qdr'); mail(bQ0, 2, 6); mail(bQ1, 2, 6); st('m_v')
    for i in range(8): w.e(f'ds_write_b128 v7, {v(12 if i < 4 else 16, 4)} offset:{2048*i}')
    publish(w, ev('M', 'one'))
    w.e(f's_lshl_b32 s6, {s(sJ)}, 7'); w.e(f's_add_u32 s6, s6, {CNT_CS}')
    gpoll(w, P_WS, 's6', 16, 4, True)
    w.e('v_lshlrev_b32 v7, 3, v0'); w.e(f's_lshl_b32 s6, {s(sJ)}, 9'); w.e(f's_add_u32 s6, s6, {WS_CSP}')
    for i in range(8):
        w.e(f'buffer_load_dwordx2 {v(32+2*i,2)}, v7, {s(R_WS,4)}, s6 offen sc1')
        if i < 7: w.e('s_add_u32 s6, s6, 7168')
    lwait(w, 'C', 'x1dr'); mail(bX, 7, 1); st('m_x1')
    for i in range(1, 8):
        w.e(f'v_add_f32 v32, v32, {v(32+2*i)}'); w.e(f'v_add_f32 v33, v33, {v(33+2*i)}')
    w.e(f'v_add_u32 v8, {L_CS3}, v7'); w.e('ds_write_b64 v8, v[32:33]')
    publish(w, ev('M', 'cs'))
    if OPT['r3']:
        srd(w, R_T, P_WO, 512 * KB); w.e(f's_lshl_b32 s6, {s(sIDX)}, 14'); w.e('s_add_u32 s6, s6, s58')
        w.e('s_mov_b64 exec, 0xffff'); w.e(f'buffer_load_dword v251, v10, {s(R_T,4)}, s6 offen'); w.e('s_mov_b64 exec, -1')
        w.e(f's_lshl_b32 s6, {s(sIDX)}, 16'); w.e('s_add_u32 s6, s6, s58'); w.e(f'buffer_load_dword v250, v10, {s(R_W4,4)}, s6 offen')
    lwait(w, 'C', 'odr'); mail(bO, 12, 5); w.waitcnt(lg=0); mail(bO, 4, 5, sOne, 12); st('m_o')
    lwait(w, 'C', 'adr'); mail(bH3, 8, 2, sV4); st('m_a')
    lwait(w, 'C', 'bdr'); mail(bH3, 8, 3, sV4); st('m_b')
    st.dump()
    w.e('s_endpgm')
    return w

class Filler:
    def __init__(self): self.q = []
    def add(self, text, cost=4, tag=None): self.q.append((text, cost, tag))
    def call(self, f, cost=0): self.q.append((f, cost, None))
    def pull(self, w, budget):
        while self.q and budget > 0:
            t, c, tag = self.q.pop(0)
            if callable(t): t()
            else: w.e(t, tag)
            budget -= c
    def flush(self, w): self.pull(w, 1 << 30)

def role_comp(pro):
    w = fork(pro, 'comp', 'Lcomp')
    st = Stamps(w, 8, 12, CST); w.st = st
    stubs = Wave('stubs'); w.stubs = stubs
    evs = {}; w.evs = evs
    R_OUT, R_H3 = 76, 80
    MK = 40
    sRH, sC2, sRB, sA, sB, sT2, sHV, sM1, sM2, sO1, sO2, sR4 = 84, 85, 86, 87, 88, 89, 90, 92, 94, 96, 97, 98
    vL16 = 1; WA = [2, 3, 4]; WB = [5, 6, 7]; XR = 16; vG = 28
    ACC0, ACC1, CS, SQ, ONE, XA, WR, PK, vHo, vVo, vXr, vCom, vH = 32, 48, 64, 64, 88, 92, 96, 116, 124, 125, 126, 14, 15
    X = lambda f: 128 + 4 * f
    MF = 'v_mfma_f32_32x32x16_bf16'; M4 = 'v_mfma_f32_4x4x4_16b_bf16'
    def mark(name):
        if name not in evs: evs[name] = len(evs) + 1
        w.e(f'ds_add_u32 {v(vMy)}, {v(vOne)}'); w.lines[-1] += f'    ; mark {name}'
    def chk_rd(c, r=vF): w.e(f'ds_read_b32 {v(r)}, {v(vChk)} offset:{BLK[c[0]]}')
    def chk_cmp(c, r=vF): w.e(f'v_cmp_gt_u32 vcc, {ev(*c)}, {v(r)}')
    def chk_br(c):
        a, b = lab('st'), lab('bk')
        w.e(f's_cbranch_vccnz {a}'); w.lines[-1] += f'    ; need {c[0]}:{c[1]}'; w.label(b)
        stubs.label(a)
        for t in (f'ds_read_b32 v31, {v(vChk)} offset:{BLK[c[0]]}', 's_waitcnt lgkmcnt(0)', f'v_cmp_gt_u32 vcc, {ev(*c)}, v31', f's_cbranch_vccz {b}',
                  f's_sub_u32 {s(sSP)}, {s(sSP)}, 1', f's_cbranch_scc0 {a}', f's_mov_b32 {s(sSP)}, 0', f's_branch {b}'): stubs._push(Ins(t))
    def chk(c): chk_rd(c, 31); chk_cmp(c, 31); chk_br(c)
    def fchk(F, c, gap=2):
        F.call(lambda: chk_rd(c), 1000)
        for _ in range(gap - 1): F.call(lambda: None, 1000)
        F.call(lambda: chk_cmp(c), 1000); F.call(lambda: chk_br(c), 12)
    def run_steps(steps, L, fill=None, budget=16):
        def rd(i):
            steps[i]['rd']()
            for m in steps[i].get('mark', []): mark(m)
        pre = set()
        for i in range(min(L, len(steps))):
            if 'chk' in steps[i]: chk(steps[i]['chk'])
            rd(i)
        for n, sp in enumerate(steps):
            c = steps[n + L].get('chk') if n + L < len(steps) else None
            if c:
                if n + L not in pre: chk_rd(c)
                chk_cmp(c)
            sp['mm']()
            if c: chk_br(c)
            if n + L + 2 < len(steps) and 'chk' in steps[n + L + 2]: chk_rd(steps[n + L + 2]['chk']); pre.add(n + L + 2)
            if n + L < len(steps): rd(n + L)
            if 'post' in sp: sp['post']()
            busy = any(n + L + k < len(steps) and 'chk' in steps[n + L + k] for k in (1, 2, 3, 4, 5))
            if fill:
                if busy and fill.q and fill.q[0][1] == 1000 and not fill.__dict__.get('open'): continue
                fill.open = bool(fill.q) and fill.q[0][1] == 1000
                b = sp.get('budget', budget)
                while fill.q and b > 0:
                    if fill.q[0][1] == 1000 and not fill.open: break
                    b -= fill.q[0][1]; fill.pull(w, 1) if fill.q[0][1] else fill.q.pop(0)[0]()
    def tr(dst, bases, addr, second):
        for i, a in enumerate((addr, addr + second)):
            w.e(f'ds_read_b64_tr_b16 {v(dst+2*i,2)}, {v(bases[a >> 16])} offset:{a & 0xffff}')
    def windows(b):
        w.e(f'v_add_u32 {v(b[1])}, 0x10000, {v(b[0])}'); w.e(f'v_add_u32 {v(b[2])}, 0x20000, {v(b[0])}')
    srd(w, R_WS, P_WS, WS_END); srd(w, R_OUT, P_OUT, 2 * MB)
    st('rt0', True); st('start', True)
    w.e(f's_and_b32 {s(sRH)}, s3, 1'); w.e(f's_lshr_b32 {s(sC2)}, s3, 1')
    w.e(f's_lshl_b32 {s(sRB)}, {s(sR64)}, 1'); w.e(f's_add_u32 {s(sRB)}, {s(sRB)}, {s(sRH)}')
    w.e(f'v_lshlrev_b32 {v(vL16)}, 4, v0'); w.e(f'v_lshrrev_b32 {v(vH)}, 5, v0'); w.e('v_and_b32 v8, 31, v0')
    w.e(f's_lshl_b32 {s(sA)}, s3, 2'); w.e(f's_add_u32 {s(sA)}, {s(sA)}, {FL}'); w.e(f'v_add_u32 {v(vMy)}, {s(sA)}, {v(vL16)}'); w.e(f'v_mov_b32 {v(vOne)}, 1')
    w.e('v_bfe_u32 v9, v0, 2, 2'); w.e('v_and_b32 v10, 3, v0'); w.e('v_bfe_u32 v11, v0, 4, 1'); w.e('v_bfe_u32 v12, v0, 3, 1')
    w.e(f'v_lshlrev_b32 {v(vCom)}, 7, v9'); w.e(f'v_lshl_add_u32 {v(vCom)}, v10, 3, {v(vCom)}'); w.e(f'v_lshl_add_u32 {v(vCom)}, v11, 5, {v(vCom)}'); w.e(f'v_lshl_add_u32 {v(vCom)}, v12, 6, {v(vCom)}')
    w.e(f's_lshl_b32 {s(sA)}, {s(sC2)}, 6'); w.e(f'v_xor_b32 {v(WA[0])}, {s(sA)}, {v(vCom)}'); w.e(f'v_lshl_add_u32 {v(WA[0])}, {v(vH)}, 10, {v(WA[0])}'); windows(WA)
    w.e(f's_lshl_b32 {s(sA)}, {s(sRH)}, 5'); w.e(f'v_add_u32 v9, {s(sA)}, v8')
    vHk, vHc = WB[0], WB[1]
    w.e(f'v_lshlrev_b32 {v(vHk)}, 4, v9'); w.e(f'v_add_u32 {v(vHk)}, {L_HK}, {v(vHk)}')
    w.e(f's_lshl_b32 {s(sA)}, {s(sC2)}, 7'); w.e(f's_add_u32 {s(sA)}, {s(sA)}, {L_HC}'); w.e(f'v_lshl_add_u32 {v(vHc)}, {v(vH)}, 4, {s(sA)}')
    w.e('v_lshlrev_b32 v9, 7, v9'); w.e('v_bfe_u32 v10, v0, 1, 3')
    w.e(f'v_xor_b32 v12, v10, {v(vH)}'); w.e(f'v_lshl_add_u32 {v(XA)}, v12, 4, v9')
    for k in range(1, 4): w.e(f'v_xor_b32 {v(XA+k)}, {32*k}, {v(XA)}')
    w.e(f's_lshl_b32 {s(sA)}, {s(sC2)}, 2'); w.e(f'v_xor_b32 v12, {s(sA)}, v10'); w.e(f'v_lshl_add_u32 {v(vXr)}, v12, 4, v9'); w.e(f'v_lshl_add_u32 {v(vXr)}, {v(vH)}, 3, {v(vXr)}')
    w.e(f'v_add_u32 {v(vXr)}, {L_Q}, {v(vXr)}')
    for i in range(4): w.e(f'v_mov_b32 {v(ONE+i)}, 0x3f803f80')
    w.e(f's_lshr_b32 {s(sA)}, {s(sCS)}, 2'); w.e(f's_add_u32 {s(sA)}, {s(sA)}, 1'); w.e(f's_sub_u32 {s(sB)}, 0, {s(sA)}')
    w.e(f's_bitcmp1_b32 {s(sCS)}, 1'); w.e(f's_cselect_b32 {s(sA)}, {s(sB)}, {s(sA)}')
    w.e(f's_lshl_b32 {s(sB)}, {s(sRB)}, 5'); w.e(f's_add_u32 {s(sA)}, {s(sA)}, {s(sB)}'); w.e(f'v_add_u32 v9, {s(sA)}, v8')
    w.e(f's_movk_i32 {s(sA)}, 2048'); w.e(f'v_cmp_gt_u32 {s(sHV,2)}, {s(sA)}, v9')
    w.e('v_bfe_u32 v10, v9, 5, 6'); w.e('v_and_b32 v9, 31, v9'); w.e(f'v_lshlrev_b32 {v(vHo)}, 15, v10'); w.e(f'v_lshl_add_u32 {v(vHo)}, v9, 4, {v(vHo)}'); w.e(f'v_lshl_add_u32 {v(vHo)}, {v(vH)}, 9, {v(vHo)}')
    w.e('v_and_b32 v9, 15, v0'); w.e(f'v_lshlrev_b32 {v(vVo)}, 16, v11'); w.e(f'v_lshl_add_u32 {v(vVo)}, v9, 4, {v(vVo)}'); w.e(f'v_lshl_add_u32 {v(vVo)}, {v(vH)}, 8, {v(vVo)}')
    w.e('v_and_b32 v9, 1, v0'); w.e(f'v_cmp_ne_u32 {s(sM1,2)}, 0, v9'); w.e('v_and_b32 v9, 2, v0'); w.e(f'v_cmp_ne_u32 {s(sM2,2)}, 0, v9')
    w.e(f'v_lshlrev_b32 v9, 2, {v(vH)}'); w.e('v_sub_u32 v9, v8, v9')
    for r in range(16): w.e(f'v_cmp_le_i32 {s(MK+2*r,2)}, {8*(r>>2)+(r&3)}, v9')
    p4_ids(w)
    w.e(f's_lshl_b32 {s(sT2)}, {s(sCS)}, 1'); w.e(f's_add_u32 {s(sT2)}, {s(sT2)}, {s(sC2)}'); w.e(f's_lshl_b32 {s(sT2)}, {s(sT2)}, 1')
    w.e(f's_lshl_b32 {s(sO1)}, {s(sT2)}, 16'); w.e(f's_lshl_b32 {s(sA)}, {s(sRB)}, 10'); w.e(f's_add_u32 {s(sO1)}, {s(sO1)}, {s(sA)}')

    def ln_consts(E, vs, vq, K):
        E(f'v_permlane32_swap_b32 {v(vs)}, {v(vq)}'); E(f'v_add_f32 {v(vs)}, {v(vs)}, {v(vq)}'); E(f'v_mov_b32 {v(vq)}, {v(vs)}')
        E(f'v_permlane32_swap_b32 {v(vs)}, {v(vq)}')
        E(f'v_mul_f32 {v(K)}, {fl(-1/512)}, {v(vs)}'); E(f'v_mul_f32 {v(vq)}, {fl(1/512)}, {v(vq)}')
        E(f'v_fma_f32 {v(vq)}, -{v(K)}, {v(K)}, {v(vq)}'); E(f'v_max_f32 {v(vq)}, 0, {v(vq)}'); E(f'v_add_f32 {v(vq)}, {fl(1e-5)}, {v(vq)}')
        E(f'v_rsq_f32 {v(vs)}, {v(vq)}')
        E(f'v_mul_f32 {v(K+1)}, {v(vq)}, {v(vs)}'); E(f'v_mul_f32 {v(K+2)}, {fl(C0)}, {v(vs)}'); E(f'v_mul_f32 {v(vq)}, {v(vs)}, {v(vs)}')
        E(f'v_mul_f32 {v(vq)}, {v(vq)}, {v(vs)}'); E(f'v_mul_f32 {v(K+3)}, {fl(C1)}, {v(vq)}')
    def gelu_packed(acc, cs, K, pk):
        P2 = lambda r: v(r, 2)
        for p in range(8): w.e(f'v_pk_fma_f32 {P2(acc+2*p)}, {P2(cs+2*p)}, {P2(K)}, {P2(acc+2*p)} op_sel_hi:[1,0,1]')
        for p in range(8): w.e(f'v_pk_mul_f32 {P2(cs+2*p)}, {P2(acc+2*p)}, {P2(acc+2*p)}')
        for p in range(8): w.e(f'v_pk_fma_f32 {P2(cs+2*p)}, {P2(cs+2*p)}, {P2(K+2)}, {P2(K+2)} op_sel:[0,1,0] op_sel_hi:[1,1,0]')
        for p in range(8): w.e(f'v_pk_mul_f32 {P2(cs+2*p)}, {P2(cs+2*p)}, {P2(acc+2*p)}')
        for r in range(16): w.e(f'v_exp_f32 {v(cs+r)}, {v(cs+r)}')
        for p in range(8): w.e(f'v_pk_fma_f32 {P2(cs+2*p)}, {P2(cs+2*p)}, {P2(K)}, {P2(K)} op_sel:[0,1,1] op_sel_hi:[1,1,1]')
        for r in range(16): w.e(f'v_rcp_f32 {v(cs+r)}, {v(cs+r)}')
        for p in range(8): w.e(f'v_pk_mul_f32 {P2(acc+2*p)}, {P2(acc+2*p)}, {P2(cs+2*p)}')
        for p in range(8): w.e(f'v_cvt_pk_bf16_f32 {v(pk+p)}, {v(acc+2*p)}, {v(acc+2*p+1)}')
    def gelu_plain(F, acc, cs, K, pk, half):
        for g in range(2):
            R = range(8 * g, 8 * g + 8); tt = lambda r: v(cs + r)
            for r in R: F.add(f'v_fmac_f32 {v(acc+r)}, {tt(r)}, {v(K)}')
            for r in R: F.add(f'v_mul_f32 {tt(r)}, {v(acc+r)}, {v(acc+r)}')
            for r in R: F.add(f'v_fma_f32 {tt(r)}, {tt(r)}, {v(K+3)}, {v(K+2)}')
            for r in R: F.add(f'v_mul_f32 {tt(r)}, {tt(r)}, {v(acc+r)}')
            for r in R: F.add(f'v_exp_f32 {tt(r)}, {tt(r)}', 8)
            for r in R: F.add(f'v_fma_f32 {tt(r)}, {tt(r)}, {v(K+1)}, {v(K+1)}')
            for r in R: F.add(f'v_rcp_f32 {tt(r)}, {tt(r)}', 8)
            for r in R: F.add(f'v_mul_f32 {v(acc+r)}, {v(acc+r)}, {tt(r)}')
            for p in range(4 * g, 4 * g + 4): F.add(f'v_cvt_pk_bf16_f32 {v(pk+p)}, {v(acc+2*p)}, {v(acc+2*p+1)}')
            half(g)

    L = 3
    lcs, ljoin = lab('hc'), lab('hj')
    w.e('s_add_u32 s6, s3, 1'); w.e('s_bitcmp1_b32 s6, 1'); w.e(f's_cbranch_scc1 {lcs}')
    sv = list(w.vm), list(w.lg), list(w.hist)
    for var in range(2):
        if var: w.label(lcs); w.vm, w.lg, w.hist = sv
        steps = []
        for n in range(32):
            c, ks = n >> 2, n & 3
            def rd(n=n, c=c, ks=ks):
                if n == 16:
                    for k in range(4): w.e(f'v_add_u32 {v(XA+k)}, 0x10000, {v(XA+k)}')
                w.e(f'ds_read_b128 {v(X(n),4)}, {v(XA+ks)} offset:{SL(c & 3)}')
                tr(WR + 4 * (n % L), WA, SL(c) + 8192 + ks * 2048, 512)
            def mm(n=n):
                z = lambda r, k: '0' if n == 0 else v(r, k)
                wr = v(WR + 4 * (n % L), 4)
                if OPT['x1'] == 2: return
                if OPT['x1'] == 1: pass
                elif var == 0:
                    for hf in range(2):
                        xx = v(X(n) + 2 * hf, 2)
                        w.e(f'{M4} {v(SQ+8*hf,4)}, {xx}, {xx}, {z(SQ+8*hf,4)}'); w.e(f'{M4} {v(SQ+4+8*hf,4)}, {v(ONE,2)}, {xx}, {z(SQ+4+8*hf,4)}')
                else: w.e(f'{MF} {v(CS,16)}, {wr}, {v(ONE,4)}, {z(CS,16)}')
                w.e(f'{MF} {v(ACC0,16)}, {wr}, {v(X(n),4)}, {z(ACC0,16)}')
            sp = dict(rd=rd, mm=mm)
            if ks == 0: sp['chk'] = ('D', f'f{c}')
            if n == 15: sp['mark'] = ['c3']
            sp['post'] = (lambda c=c, ks=ks, n=n: (st(f'h{c}') if ks == 0 else None, st(f'sh{n:02d}')))
            steps.append(sp)
        run_steps(steps, L)
        if var == 0:
            for i in range(5): w.e(f'v_add_f32 {v(SQ+i)}, {v(SQ+i)}, {v(SQ+8+i)}')
            w.e(f'v_cndmask_b32 v12, {v(SQ)}, {v(SQ+1)}, {s(sM1,2)}'); w.e(f'v_cndmask_b32 v13, {v(SQ+2)}, {v(SQ+3)}, {s(sM1,2)}'); w.e(f'v_cndmask_b32 v13, v12, v13, {s(sM2,2)}')
            ln_consts(w.e, SQ + 4, 13, 8)
            w.e(f'ds_write_b128 {v(vHk)}, v[8:11]'); mark('hx'); w.waitcnt(vm=0); w.e(f's_branch {ljoin}')
        else:
            w.e('s_mov_b32 exec_lo, 1'); w.e('s_mov_b32 exec_hi, 1')
            for j in range(4): w.e(f'ds_write_b128 {v(vHc)}, {v(CS+4*j,4)} offset:{32*j}')
            w.e('s_mov_b64 exec, -1'); mark('hx'); w.waitcnt(vm=0)
    w.label(ljoin)
    nev = [2]
    def mark2(name):
        nev[0] += 1; evs[name] = nev[0]
        w.e(f'ds_add_u32 {v(vMy)}, {v(vOne)}'); w.lines[-1] += f'    ; mark {name}'
    mark = mark2
    st('hend')

    L = 5
    fill = Filler()
    ACC2 = 80 - 16 + 16
    QA = (ACC1, 80, ACC1)
    fchk(fill, ('C', 'hx'))
    fill.add(f'ds_read_b128 v[8:11], {v(vHk)}', 6)
    for j in range(4): fill.add(f'ds_read_b128 {v(CS+4*j,4)}, {v(vHc)} offset:{32*j}', 6)
    fill.add(f's_lshl_b32 {s(sA)}, {s(sT2)}, 10'); fill.add(f's_add_u32 {s(sA)}, {s(sA)}, {WS_HS}', 30)
    def hhalf(u):
        for p in range(4 * u, 4 * u + 4): fill.add(f'v_cndmask_b32 {v(PK+p)}, 0, {v(PK+p)}, {s(sHV,2)}')
        fill.add(f'buffer_store_dwordx4 {v(PK+4*u,4)}, {v(vHo)}, {s(R_WS,4)}, {s(sA)} offen offset:{1024*u} sc1', 10, 'hst')
    gelu_plain(fill, ACC0, CS, 8, PK, hhalf)
    fill.call(lambda: st('hst'))
    def qkv_epi(i, F):
        acc = QA[i]
        if i == 0:
            for r in range(16): F.add(f'v_mul_f32 {v(acc+r)}, {fl(0.25*LOG2E)}, {v(acc+r)}')
        for p in range(8): F.add(f'v_cvt_pk_bf16_f32 {v(PK+p)}, {v(acc+2*p)}, {v(acc+2*p+1)}')
        base = (WS_Q, WS_K, WS_V)[i]
        F.add(f's_add_u32 {s(sA)}, {s(sO1)}, {base}')
        if i < 2:
            F.add(f's_add_u32 {s(sB)}, {s(sO1)}, {base + 65536}')
            F.add(f'buffer_store_dwordx4 {v(PK,4)}, {v(vL16)}, {s(R_WS,4)}, {s(sA)} offen sc1', 10, 'qkvst')
            F.add(f'buffer_store_dwordx4 {v(PK+4,4)}, {v(vL16)}, {s(R_WS,4)}, {s(sB)} offen sc1', 10, 'qkvst')
        else:
            for u in range(2): F.add(f'buffer_store_dwordx4 {v(PK+4*u,4)}, {v(vVo)}, {s(R_WS,4)}, {s(sA)} offen offset:{512*u} sc1', 10, 'qkvst')
    steps = []
    for n in range(96):
        i, f = n // 32, n % 32
        t = 8 + n // 8
        def rd(n=n, f=f, t=t):
            tr(WR + 4 * (n % L), WA, SL(t % 9) + (f % 8) * 2048, 512)
            if n == 95: assert not fill.q; w.wait_vm_tag('qkvst')
        def mm(n=n, i=i, f=f):
            acc = QA[i]; wr = v(WR + 4 * (n % L), 4); xf = v(X(f), 4)
            a, b = (wr, xf) if i < 2 else (xf, wr)
            if OPT['x1'] == 2: return
            w.e(f'{MF} {v(acc,16)}, {a}, {b}, {"0" if f == 0 else v(acc,16)}')
        sp = dict(rd=rd, mm=mm)
        if f % 8 == 0: sp['chk'] = ('D', f'f{t}')
        if n == 31: sp['mark'] = ['c11']
        if n == 95: sp['mark'] = ['vdone']
        def post(n=n, i=i, f=f):
            if f == 3 and i > 0: qkv_epi(i - 1, fill)
            if n in (80, 81, 82, 83):
                j = n - 80
                w.e(f'ds_read_b64 {v(XR+2*j,2)}, {v(vXr)}')
                if j < 3: w.e(f'v_xor_b32 {v(vXr)}, {16*(j ^ (j+1))}, {v(vXr)}')
            if n == 63: fill.flush(w); w.wait_vm_tag('hst'); mark('hdr')
            if f == 31: st(f'q{i}')
            st(f'sq{n:02d}')
        sp['post'] = post
        steps.append(sp)
    run_steps(steps, L, fill, OPT['hb'])
    def splitk_bases():
        w.e(f's_lshl_b32 {s(sA)}, {s(sC2)}, 6'); w.e(f'v_xor_b32 {v(WA[0])}, {s(sA)}, {v(vCom)}'); w.e(f'v_lshl_add_u32 {v(WA[0])}, {v(vH)}, 9, {v(WA[0])}')
        w.e(f's_lshl_b32 {s(sA)}, {s(sC2)}, 13'); w.e(f'v_add_u32 {v(WA[0])}, {s(sA)}, {v(WA[0])}'); w.e(f'v_xor_b32 {v(WB[0])}, 64, {v(WA[0])}')
        windows(WA); windows(WB)
    fill.flush(w)
    chk_rd(('Y', 'h'))
    splitk_bases()
    qkv_epi(2, fill); fill.flush(w)

    def act_base(dst, wsoff, rbmul, khshift):
        w.e(f's_mul_i32 {s(dst)}, {s(sRB)}, {rbmul}'); w.e(f's_add_u32 {s(dst)}, {s(dst)}, {wsoff}')
        w.e(f's_lshl_b32 {s(sA)}, {s(khshift[0])}, {khshift[1]}'); w.e(f's_add_u32 {s(dst)}, {s(dst)}, {s(sA)}')
    def act_loads(F, base, slot_off, ring, tag=None):
        F.add(f's_add_u32 {s(sB)}, {s(base)}, {slot_off}', 3)
        for i in range(4): F.add(f'buffer_load_dwordx4 {v(X(ring+i),4)}, {v(vL16)}, {s(R_WS,4)}, {s(sB)} offen offset:{1024*i} sc1', 10, tag)
    def splitk_steps(slots, chks, marks, ring0, a0, a1, n0=0):
        out = []
        for n in range(8 * len(slots)):
            sl, i, own = n >> 3, (n >> 1) & 3, n & 1
            g = n0 + n
            def rd(sl=sl, i=i, g=g, own=own): tr(WR + 4 * (g % 5), WA if own else WB, SL(slots[sl]) + i * 2048, 1024)
            def mm(n=n, g=g, own=own):
                a = a0 if own else a1
                w.e(f'{MF} {v(a,16)}, {v(WR+4*(g%5),4)}, {v(X((ring0 + (n >> 1)) % 32), 4)}, {"0" if n < 2 else v(a,16)}')
            sp = dict(rd=rd, mm=mm)
            if n & 7 == 0 and chks[sl]: sp['chk'] = chks[sl] if isinstance(chks[sl], tuple) else ('D', chks[sl])
            if n & 7 == 7 and marks[sl]: sp['mark'] = [marks[sl]]
            out.append(sp)
        return out
    act_base(sO2, WS_HS, 32768, (sC2, 12))
    chk_cmp(('Y', 'h')); chk_br(('Y', 'h'))
    st('p2go')
    for sl in range(2): act_loads(fill, sO2, sl * 8192, 4 * sl)
    fill.flush(w)
    for sl in range(2, 4): act_loads(fill, sO2, sl * 8192, 4 * sl)
    fill.call(lambda: mark('hl'))
    PK = 120
    steps = splitk_steps(S_W2, ['f20', 'f21', 'f23', ('C', 'vdone')], [None] * 4, 0, ACC0, ACC1)
    steps[0]['post'] = lambda: (w.wait_vm_tag('qkvst'), mark('qdr'))
    run_steps(steps, 5, fill, 10)
    fill.flush(w)
    st('p2mm')
    def exchange(slot, src, dst, name, between=None):
        w.e(f's_lshl_b32 {s(sA)}, s3, 12'); w.e(f's_add_u32 {s(sA)}, {s(sA)}, {SL(slot)}'); w.e(f'v_add_u32 v12, {s(sA)}, {v(vL16)}'); w.e('v_xor_b32 v13, 0x2000, v12')
        for q in range(4): w.e(f'ds_write_b128 v12, {v(src+4*q,4)} offset:{1024*q}')
        mark(name)
        if between: between()
        chk(('C', name))
        for q in range(4): w.e(f'ds_read_b128 {v(dst+4*q,4)}, v13 offset:{1024*q}')
    def add_x():
        for p in range(8):
            w.e(f'v_lshlrev_b32 {v(80+2*p)}, 16, {v(XR+p)}'); w.e(f'v_and_b32 {v(81+2*p)}, 0xffff0000, {v(XR+p)}')
        for p in range(8): w.e(f'v_pk_add_f32 {v(ACC0+2*p,2)}, {v(ACC0+2*p,2)}, {v(80+2*p,2)}')
        act_base(sO2, WS_X1, 32768, (sT2, 10))
    exchange(S_XCH, ACC1, CS, 'x2w', add_x)
    for u in range(2):
        for p in range(4 * u, 4 * u + 4): w.e(f'v_pk_add_f32 {v(ACC0+2*p,2)}, {v(ACC0+2*p,2)}, {v(CS+2*p,2)}')
        for p in range(4 * u, 4 * u + 4): w.e(f'v_cvt_pk_bf16_f32 {v(XR+p)}, {v(ACC0+2*p)}, {v(ACC0+2*p+1)}')
        w.e(f'buffer_store_dwordx4 {v(XR+4*u,4)}, {v(vL16)}, {s(R_WS,4)}, {s(sO2)} offen offset:{1024*u} sc1', 'x1st')
    w.e(f'v_pk_mul_f32 v[10:11], {v(ACC0,2)}, {v(ACC0,2)}'); w.e(f'v_pk_add_f32 v[8:9], {v(ACC0,2)}, {v(ACC0+2,2)}')
    for p in range(1, 8):
        w.e(f'v_pk_fma_f32 v[10:11], {v(ACC0+2*p,2)}, {v(ACC0+2*p,2)}, v[10:11]')
        if p > 1: w.e(f'v_pk_add_f32 v[8:9], v[8:9], {v(ACC0+2*p,2)}')
    w.e('v_add_f32 v8, v8, v9'); w.e('v_add_f32 v10, v10, v11')
    w.e('v_and_b32 v9, 31, v0'); w.e('v_lshlrev_b32 v9, 3, v9'); w.e(f'v_lshl_add_u32 v9, {v(vH)}, 2, v9')
    w.e('v_permlane32_swap_b32 v8, v10'); w.e('v_add_f32 v8, v8, v10')
    act_base(sO2, WS_STATS, 4096, (sT2, 7))
    w.e(f'buffer_store_dword v8, v9, {s(R_WS,4)}, {s(sO2)} offen sc1', 'x1st')
    st('p2end')

    O, NM, SA, SB, KF, VF, SC, M, KP, PD, PO, MD = 32, 48, 64, 80, 96, 104, 224, 240, 180, 200, 208, 216
    QF = [8, 4]; vKa, vVa, mx, tm = 2, 3, 12, 13
    w.e(f's_lshl_b32 {s(sA)}, s3, 10'); w.e(f's_add_u32 {s(sB)}, {s(sA)}, {SL(S_K)}'); w.e(f'v_add_u32 {v(vKa)}, {s(sB)}, {v(vL16)}')
    w.e('v_and_b32 v12, 15, v0'); w.e(f'v_lshl_add_u32 v12, v12, 4, {s(sA)}')
    w.e(f'v_lshl_add_u32 {v(vVa)}, {v(vH)}, 8, v12'); w.e(f'v_add_u32 {v(vVa)}, {SL(S_V)}, {v(vVa)}'); w.e(f'v_add_u32 v12, {SL(S_ONE)}, v12')
    w.e('s_mov_b32 vcc_lo, 0xffff0000'); w.e('s_mov_b32 vcc_hi, 0xffff0000'); w.e(f'v_cndmask_b32 {v(vVa)}, {v(vVa)}, v12, vcc')
    w.e('v_mov_b32 v4, 0xffff'); w.e('v_mov_b32 v5, 0xffff0000')
    for p in range(8):
        w.e(f'v_cndmask_b32 {v(MD+p)}, 0, v4, {s(MK+4*p,2)}'); w.e(f'v_cndmask_b32 v12, 0, v5, {s(MK+4*p+2,2)}'); w.e(f'v_or_b32 {v(MD+p)}, {v(MD+p)}, v12')
    w.e(f's_lshl_b32 {s(sO1)}, {s(sQB)}, 3'); w.e(f's_add_u32 {s(sO1)}, {s(sO1)}, s3'); w.e(f's_lshl_b32 {s(sO1)}, {s(sO1)}, 5'); w.e(f's_add_u32 {s(sO1)}, {s(sO1)}, {s(sHD)}')
    w.e(f's_lshl_b32 {s(sO1)}, {s(sO1)}, 10'); w.e(f's_add_u32 {s(sO1)}, {s(sO1)}, {WS_O}')
    w.e(f's_lshl_b32 {s(sR4)}, {s(sRB128)}, 2'); w.e(f's_add_u32 {s(sR4)}, {s(sR4)}, s3')
    w.e(f's_lshl_b32 {s(sO2)}, {s(sR4)}, 15'); w.e(f's_add_u32 {s(sO2)}, {s(sO2)}, {WS_X1}')
    chk(('M', 'one')); chk(('Y', 'kq'))
    def finish_o(r, E):
        E(f'v_rcp_f32 {v(tm)}, {v(O+8)}')
        for i in range(8): E(f'v_mul_f32 {v(O+i)}, {v(O+i)}, {v(tm)}')
        for p in range(4): E(f'v_cvt_pk_bf16_f32 {v(O+8+p)}, {v(O+2*p)}, {v(O+2*p+1)}')
        if r: E(f's_add_u32 {s(sO1)}, {s(sO1)}, {4*32768}')
    ost = f'buffer_store_dwordx4 {v(O+8,4)}, {v(vL16)}, {s(R_WS,4)}, {s(sO1)} offen sc1'
    xl = Filler()
    for g in range(8): act_loads(xl, sO2, 4096 * g, 4 * g)
    for r in range(2):
        q = v(QF[r], 4)
        kread = lambda dst, j: w.e(f'ds_read_b128 {v(dst,4)}, {v(vKa)} offset:{(4*r+j)*1024}')
        vread = lambda e, j, u: w.e(f'ds_read_b128 {v(VF+4*e,4)}, {v(vVa)} offset:{(4*r+j)*1024+512*u}')
        st(f'a{r}_p1')
        if r == 0:
            w.e(f'ds_read_b128 {v(QF[0],4)}, {v(vKa)} offset:{L_Q-SL(S_K)}')
            for j in (8, 0, 1, 2, 3, 4, 5, 6, 7): kread(KP + 4 * j, j)
            w.e(f'ds_read_b128 {v(QF[1],4)}, {v(vKa)} offset:{L_Q-SL(S_K)+4096}')
        S1 = lambda dst, j: w.e(f'{MF} {v(dst,16)}, {v(KP+4*j,4)}, {q}, 0')
        def mxb(b, first=False):
            if first: w.e(f'v_max_f32 {v(mx)}, {v(b)}, {v(b+1)}')
            for p in range(1 if first else 0, 8): w.e(f'v_max3_f32 {v(mx)}, {v(mx)}, {v(b+2*p)}, {v(b+2*p+1)}')
        c = ('Y', 'v') if r == 0 else ('Y', 'x1')
        fo = Filler()
        if r == 1: finish_o(0, fo.add); fo.add(ost, 4, 'ost')
        S1(M, 8); S1(SA, 0); S1(SB, 1); fo.pull(w, 24); S1(SC, 2); fo.flush(w)
        for i in range(16): w.e(f'v_cndmask_b32 {v(M+i)}, {v(SA+i)}, {v(M+i)}, {s(MK+2*i,2)}')
        S1(SA, 3); mxb(M, True); mxb(SB); S1(SB, 4); mxb(SC); S1(SC, 5); mxb(SA); S1(SA, 6); chk_rd(c); mxb(SB); S1(SB, 7)
        kread(KF + 4, 1); kread(KF, 2)
        mxb(SC); chk_cmp(c); mxb(SA); chk_br(c)
        vread(0, 8, 0); vread(2, 0, 0); vread(1, 8, 1); vread(3, 0, 1)
        mxb(SB)
        w.e(f'v_mov_b32 {v(tm)}, {v(mx)}'); w.e(f'v_permlane32_swap_b32 {v(mx)}, {v(tm)}'); w.e(f'v_max_f32 {v(mx)}, {v(mx)}, {v(tm)}')
        for p in range(8): w.e(f'v_pk_mul_f32 {v(NM+2*p,2)}, {v(mx,2)}, -1.0 op_sel_hi:[0,0]')
        for p in range(8): w.e(f'v_pk_add_f32 {v(M+2*p,2)}, {v(M+2*p,2)}, {v(NM,2)}')
        if r == 0: w.wait_vm_tag('x1st'); mark('x1dr')
        SBUF = lambda j: SA if j & 1 else SB
        S2 = lambda j: w.e(f'{MF} {v(SBUF(j),16)}, {v(KF+4*(j&1),4)}, {q}, {v(NM,16)}')
        PV = lambda e, p, first=False: w.e(f'{MF} {v(O,16)}, {v(VF+4*e,4)}, {v(p,4)}, {"0" if first else v(O,16)}')
        ex = lambda b, a, z: [w.e(f'v_exp_f32 {v(b+i)}, {v(b+i)}') for i in range(a, z)]
        cv = lambda b, a, z: [w.e(f'v_cvt_pk_bf16_f32 {v(PK+p)}, {v(b+2*p)}, {v(b+2*p+1)}') for p in range(a, z)]
        if r == 1: ld = lambda: xl.pull(w, 10)
        else:
            kq = [None] * 12 + [8, 0, 1, 2, 3, 4, 5, 6, 7] + [None] * 9
            def ld():
                j = kq.pop(0)
                if j is not None: w.e(f'ds_read_b128 {v(KP+4*j,4)}, {v(vKa)} offset:{(4+j)*1024}')
        st(f'a{r}_p2')
        S2(1); kread(KF + 4, 3)
        ld(); ex(M, 0, 9); cv(M, 0, 4); ld()
        for p in range(4): w.e(f'v_and_b32 {v(PD+p)}, {v(PK+p)}, {v(MD+p)}')
        for p in range(4): w.e(f'v_bfi_b32 {v(PO+p)}, {v(MD+p)}, 0, {v(PK+p)}')
        PV(0, PD, True); ex(M, 9, 13); PV(2, PO); vread(2, 1, 0); ex(M, 13, 16); ld(); cv(M, 4, 8)
        for p in range(4, 8): w.e(f'v_bfi_b32 {v(PO+p)}, {v(MD+p)}, 0, {v(PK+p)}')
        for p in range(4, 8): w.e(f'v_and_b32 {v(PD+p)}, {v(PK+p)}, {v(MD+p)}')
        PV(3, PO + 4); vread(3, 1, 1)
        pend = lambda: (PV(1, PD + 4), vread(0, 2, 0), vread(1, 2, 1))
        for j in range(1, 8):
            b = SBUF(j); e = 2 * (j & 1)
            ex(b, 0, 3); pend(); ex(b, 3, 6)
            if j < 7:
                S2(j + 1)
                if j + 3 < 8: kread(KF + 4 * ((j + 1) & 1), j + 3)
            ld(); ex(b, 6, 9); cv(b, 0, 4); ex(b, 9, 11); PV(e, PK); ld(); ex(b, 11, 16); ld(); cv(b, 4, 8)
            def pend(j=j, e=e):
                PV(e + 1, PK + 4)
                if j + 2 < 8: vread(e, j + 2, 0); vread(e + 1, j + 2, 1)
        pend()
        st(f'a{r}_end')

    CS4, AC = 48, [64, 80]
    vCs = 30
    lsp, lsj = lab('sp'), lab('sj')
    act_o = lambda: act_base(sO2, WS_O, 32768, (sC2, 12))
    w.e(f's_cmp_eq_u32 {s(sV4)}, 0'); w.e(f's_cbranch_scc1 {lsp}')
    ev0 = nev[0]
    w.e(f'v_lshl_add_u32 {v(WA[0])}, {v(vH)}, 9, {v(vCom)}'); w.e(f'v_xor_b32 {v(WB[0])}, 64, {v(WA[0])}'); windows(WA); windows(WB)
    L = 5
    fill = Filler()
    fill.add(f's_lshl_b32 {s(sA)}, {s(sR4)}, 12', 3); fill.add(f's_add_u32 {s(sA)}, {s(sA)}, {WS_STATS}', 3)
    fill.add('v_and_b32 v9, 31, v0'); fill.add('v_lshlrev_b32 v9, 3, v9'); fill.add(f'v_lshl_add_u32 v9, {v(vH)}, 11, v9')
    fill.q += xl.q; xl.q = []
    for i in range(8): fill.add(f'buffer_load_dwordx2 {v(CS4+2*i,2)}, v9, {s(R_WS,4)}, {s(sA)} offen offset:{256*i} sc1', 10)
    fill.call(lambda: mark('att'), 10)
    finish_o(1, fill.add); fill.add(ost, 10, 'ost')
    for t_ in (f's_mul_i32 {s(sO1)}, {s(sR4)}, {112*1024}', f's_lshl_b32 {s(sA)}, {s(sJ)}, 13', f's_add_u32 {s(sO1)}, {s(sO1)}, {s(sA)}', f's_add_u32 {s(sO1)}, {s(sO1)}, {WS_H3}'): fill.add(t_, 3)
    fill.call(act_o, 12)
    fill.add(f'v_lshlrev_b32 {v(vCs)}, 4, {v(vH)}'); fill.add(f'v_add_u32 {v(vCs)}, {L_CS3}, {v(vCs)}')
    fchk(fill, ('M', 'cs'))
    for i in range(1, 8):
        fill.add(f'v_add_f32 {v(CS4)}, {v(CS4)}, {v(CS4+2*i)}'); fill.add(f'v_add_f32 {v(CS4+1)}, {v(CS4+1)}, {v(CS4+2*i+1)}')
    ln_consts(fill.add, CS4, CS4 + 1, 8)
    def cs_reads(F, t):
        for j in range(4): F.add(f'ds_read_b128 {v(CS4+4*j,4)}, {v(vCs)} offset:{128*t+32*j}', 6)
    def h3_store(F, t, u):
        if u == 0: F.add(f's_add_u32 {s(sA)}, {s(sO1)}, {2048*t}', 3)
        F.add(f'buffer_store_dwordx4 {v(PK+4*u,4)}, {v(vL16)}, {s(R_WS,4)}, {s(sA)} offen offset:{1024*u} sc1', 10, f'h3st{t >> 1}')
    ol = Filler()
    for sl in range(4): act_loads(ol, sO2, sl * 8192, 4 * sl)
    steps = []
    for n in range(128):
        t, f = n >> 5, n & 31
        def rd(n=n, t=t, f=f): tr(WR + 4 * (n % L), (WA, WB)[t & 1], SL((S_W3A, S_W3B)[t >> 1][f >> 3]) + (f & 7) * 2048, 1024)
        def mm(n=n, t=t, f=f):
            w.e(f'{MF} {v(AC[t&1],16)}, {v(WR+4*(n%L),4)}, {v(X(f),4)}, {"0" if f == 0 else v(AC[t&1],16)}')
        sp = dict(rd=rd, mm=mm, budget=16 if t == 0 else 22)
        if n == 0: sp['chk'] = ('D', 'w303')
        if n == 64: sp['chk'] = ('D', 'w311')
        if n == 80: sp['chk'] = ('D', 'w313')
        if n == 104: sp['chk'] = ('Y', 'o')
        if n == 63: sp['mark'] = ['p4a']
        if n == 127: sp['mark'] = ['p4b']
        def post(n=n, t=t, f=f):
            if f % 16 == 15: st(f'p4_{t}_{f}')
            if f == 31:
                fill.flush(w)
                cs_reads(fill, t)
                if t < 3: fill.call(lambda: None, 40); gelu_plain(fill, AC[t & 1], CS4, 8, PK, lambda u: h3_store(fill, t, u))
            if n == 44: w.wait_vm_tag('ost'); mark('odr')
            if n == 112: w.wait_vm_tag('h3st0'); mark('adr')
            if t == 3 and f >= 4: ol.pull(w, 5 if f & 1 else 0) if f < 24 else ol.pull(w, 10)
        sp['post'] = post
        steps.append(sp)
    run_steps(steps, L, fill)
    fill.flush(w); ol.flush(w)
    splitk_bases()
    gelu_packed(AC[1], CS4, 8, PK)
    h3_store(fill, 3, 0); h3_store(fill, 3, 1); fill.flush(w)
    sp_ = Wave('spare'); sp_.label(lsp); wm = w
    sp_.e('s_nop 15'); sp_._push(Ins('s_waitcnt vmcnt(0) lgkmcnt(0)'))
    w = sp_
    finish_o(1, w.e); w.e(ost, 'ost'); act_o(); splitk_bases(); w.waitcnt(vm=0)
    w.e(f'v_mov_b32 {v(vF)}, {nev[0] - ev0}'); w.e(f'ds_add_u32 {v(vMy)}, {v(vF)}')
    lwait(w, 'Y', 'o')
    for sl in range(4): act_loads(fill, sO2, sl * 8192, 4 * sl)
    fill.flush(w); w.waitcnt(vm=0)
    w.e(f's_branch {lsj}')
    w = wm; w.spare = sp_
    w.label(lsj)
    st('p4end')

    A0, A1, B0, B1 = 32, 48, 64, 80
    w.e('v_and_b32 v9, 31, v0'); w.e('v_lshlrev_b32 v10, 2, v9'); w.e(f's_lshl_b32 {s(sA)}, {s(sRB)}, 7'); w.e(f's_add_u32 {s(sA)}, {s(sA)}, {WS_G}')
    w.e(f'buffer_load_dword {v(vG)}, v10, {s(R_WS,4)}, {s(sA)} offen sc1')
    act_base(sO2, WS_H3, 112 * 1024, (sC2, 13))
    h3l = lambda i: act_loads(fill, sO2, (i % 7) * 16384 + (i // 7) * 4096, (16 + 4 * i) % 32)
    s5 = splitk_steps(S_WO, ['wo3', None, None, None], [None, 'o1', None, 'o3'], 0, A0, A1)
    s6 = splitk_steps(S_W4, [f'w4_{i}' for i in range(12)] + ['w4_12', 'w4_13'], [f'g{i}' if i in (1, 3, 5) else None for i in range(14)], 16, B0, B1, n0=32)
    fchk(fill, ('Y', 'a'), 1)
    for k in range(LA6): h3l(k)
    s5[24]['post'] = lambda: (w.wait_vm_tag('h3st1'), mark('bdr'))
    s5[31]['post'] = lambda: st('p5end')
    for i in range(14 - LA6): s6[8 * i]['post'] = (lambda i=i: ((fill.flush(w), chk(('Y', 'b'))) if i + LA6 == 7 else None, h3l(i + LA6), st(f'p6_{i}')))
    def mixprep():
        fill.add(f'v_sub_f32 {v(vG+1)}, 1.0, {v(vG)}')
        for r in range(32): fill.add(f'v_mul_f32 {v(A0+r)}, {v(A0+r)}, {v(vG)}')
        for p in range(8):
            fill.add(f'v_lshlrev_b32 v10, 16, {v(XR+p)}'); fill.add(f'v_and_b32 v11, 0xffff0000, {v(XR+p)}')
            fill.add(f'v_fmac_f32 {v(A0+2*p)}, v10, {v(vG+1)}'); fill.add(f'v_fmac_f32 {v(A0+2*p+1)}, v11, {v(vG+1)}')
        fill.add(f'v_lshlrev_b32 v10, 10, v9'); fill.add(f'v_lshl_add_u32 v10, {v(vH)}, 4, v10')
        fill.add(f's_lshl_b32 {s(sO1)}, {s(sRB)}, 15'); fill.add(f's_lshl_b32 {s(sA)}, {s(sT2)}, 5'); fill.add(f's_add_u32 {s(sO1)}, {s(sO1)}, {s(sA)}')
    s6[81]['post'] = mixprep
    run_steps(s5 + s6, 5, fill, 10)
    fill.flush(w)
    st('p6mm')
    g1 = v(vG, 2)
    for p in range(8): w.e(f'v_pk_fma_f32 {v(A1+2*p,2)}, {v(B1+2*p,2)}, {g1}, {v(A1+2*p,2)} op_sel:[0,1,0] op_sel_hi:[1,1,1]')
    def own():
        for p in range(8): w.e(f'v_pk_fma_f32 {v(A0+2*p,2)}, {v(B0+2*p,2)}, {g1}, {v(A0+2*p,2)} op_sel:[0,1,0] op_sel_hi:[1,1,1]')
    exchange(S_XF, A1, B1, 'xfw', own)
    for u in range(2):
        for p in range(4 * u, 4 * u + 4): w.e(f'v_pk_add_f32 {v(A0+2*p,2)}, {v(A0+2*p,2)}, {v(B1+2*p,2)}')
        for p in range(4 * u, 4 * u + 4): w.e(f'v_cvt_pk_bf16_f32 {v(PK+p)}, {v(A0+2*p)}, {v(A0+2*p+1)}')
        w.e(f'v_permlane32_swap_b32 {v(PK+4*u)}, {v(PK+4*u+2)}'); w.e(f'v_permlane32_swap_b32 {v(PK+4*u+1)}, {v(PK+4*u+3)}')
        w.e(f'buffer_store_dwordx4 {v(PK+4*u,4)}, v10, {s(R_OUT,4)}, {s(sO1)} offen offset:{32*u}')
    if DIAG:
        w.waitcnt(vm=0); st.n = 14; st('end', True); st('rt1', True); st.dump()
    w.e('s_endpgm')
    return w

def build():
    uid[0] = 0
    pro = prologue()
    c = role_comp(pro)
    EV['C'] = dict(c.evs)
    return pro, role_dma(pro), role_misc(pro), role_sync(pro), c

def main():
    out = sys.argv[1]
    build()
    pro, d, m, y, c = build()
    assert max(EV['C'].values()) <= 62
    for r in (d, y, m, c): print(r.name, 'instr', r.count, 'nop states', r.nops, file=sys.stderr)
    hdr = open('gated_mix__sliding_block__mixer_s_mlp__prompt.s.ref').read().split('; Override launch')[0]
    txt = hdr + f'''; One persistent launch: 256 workgroups (one per CU), 4 compute waves + 2 LDS-DMA waves + 1 mailbox wave + 1 helper wave.
; @launch grid=(256,1,1) block=(512,1,1) lds=163840
.amdgcn_target "amdgcn-amd-amdhsa--gfx950"
.text
.globl {NAME}
.p2align 8
.type {NAME},@function
{NAME}:
''' + '\n'.join(x.text() for x in (pro, d, m, y, c, c.stubs, c.spare)) + f'''
Lend:
    s_endpgm
.p2align 8
Ltab:
''' + ''.join(f'    .long {i}\n' for i in range(64)) + f'''.section .rodata,"a"
.p2align 6
.amdhsa_kernel {NAME}
  .amdhsa_next_free_vgpr 256
  .amdhsa_next_free_sgpr 102
  .amdhsa_accum_offset 256
  .amdhsa_group_segment_fixed_size 0
  .amdhsa_kernarg_size 96
  .amdhsa_user_sgpr_count 2
  .amdhsa_user_sgpr_kernarg_segment_ptr 1
  .amdhsa_system_sgpr_workgroup_id_x 1
.end_amdhsa_kernel
'''
    open(out, 'w').write(txt)
    if DIAG: open(out + '.stamps', 'w').write('\n'.join(' '.join(x.st.names) for x in (c, d, y, m)))
    print(EV['C'], file=sys.stderr)
main()
```

```python
import sys, struct
from asmlib import *
from layout import *

DIAG = '--diag' in sys.argv
OPT = dict(touch=1, codepf=1, rt=0, nfl=24, stage=7, r3=1, hb=20, sleep=1, dprio=0, spin=0, x1=0, rq=2, pre=2, spf=1, adr=106, odr=30)
CST = []
for a in sys.argv[2:]:
    if a.startswith('cs:'): CST = a[3:].split(',')
    elif '=' in a: k_, v_ = a.split('='); assert k_ in OPT, k_; OPT[k_] = int(v_)
NAME = 'gated_mix__sliding_block__mixer_s_mlp__prompt_kernel'
def fl(x): return '0x%08x' % struct.unpack('<I', struct.pack('<f', x))[0]
LOG2E = 1.4426950408889634
C0 = -2.0 * LOG2E * 0.7978845608028654
C1 = C0 * 0.044715
SL = lambda i: i * 16384
SPIN = 400000
LSPIN = 4000000

P_X, P_WQKV, P_WO, P_W1, P_W2, P_W3, P_W4, P_GW, P_OUT, P_DBG, P_WS = 8, 10, 12, 16, 18, 20, 22, 24, 26, 28, 30
sX, sIDX, sCS, sR64, sRB128, sJ, sV4, sQB, sHD, sSP = 32, 33, 34, 35, 36, 37, 38, 99, 100, 101
R_WS = 72

MISC = SL(9)
FL = MISC; BLK = dict(C=0, D=1024 + 128, Y=1536, M=1792)
L_CS3 = MISC + 2048
L_HC = MISC + 2560
L_HK = MISC + 3072
L_Q = MISC + 8192
S_W2 = [2, 3, 4, 5]; S_K, S_V, S_ONE, S_XCH = 6, 7, 8, 0
S_W3A = [1, 2, 3, 4]; S_W3B = [5, 0, 6, 7]; S_WO = [8, 1, 2, 3]
S_W4 = [4, 5, 0, 6, 7, 8, 1, 2, 3, 4, 5, 0, 6, 7]
S_XF = 8
LA6 = 4
D_IDX = {f'f{t}': t + 1 for t in range(24)}
D_IDX.update({f'w30{i}': 25 + i for i in range(4)}); D_IDX.update({f'w31{i}': 29 + i for i in range(4)})
D_IDX.update({f'wo{i}': 33 + i for i in range(4)}); D_IDX.update({f'w4_{i}': 37 + i for i in range(14)})
EV = dict(C={}, D=D_IDX, Y=dict(h=1, kq=2, kvi=3, v=4, x1=5, o=6, a=7, b=8), M=dict(one=1, cs=2))
def ev(who, name): return EV[who].get(name, 63)

uid = [0]
def lab(p):
    uid[0] += 1
    return f'L{p}{uid[0]}'

def srd(w, r, ptr, nbytes):
    w.e(f's_mov_b32 {s(r)}, {s(ptr)}'); w.e(f's_and_b32 {s(r+1)}, {s(ptr+1)}, 0xffff')
    w.e(f's_mov_b32 {s(r+2)}, {nbytes}'); w.e(f's_mov_b32 {s(r+3)}, 0x20000')

def gpoll(w, base, off, target, dst, cached=False):
    a, d = lab('pc'), lab('pd')
    w.e(f's_mov_b32 {s(dst+1)}, {SPIN}')
    w.e(f's_load_dword {s(dst)}, {s(base,2)}, {off}{"" if cached else " glc"}')
    w.label(a)
    w._push(Ins('s_waitcnt lgkmcnt(0)')); w.sm = []; w.lg = []
    w.e(f's_cmp_ge_u32 {s(dst)}, {target}'); w.e(f's_cbranch_scc1 {d}')
    w.e(f's_sub_u32 {s(dst+1)}, {s(dst+1)}, 1'); w.e(f's_cbranch_scc1 {d}')
    if cached: w.e('s_sleep 32')
    w.e(f's_load_dword {s(dst)}, {s(base,2)}, {off} glc'); w.e(f's_branch {a}')
    w.label(d); w.sm = []

vChk, vMy, vOne, vF = 24, 25, 26, 27
def lwait(w, who, name, slow=None, sleep=None):
    a, d = lab('wa'), lab('wd')
    rd = lambda: (w._push(Ins(f'ds_read_b32 {v(vF)}, {v(vChk)} offset:{BLK[who]}')), w._push(Ins('s_waitcnt lgkmcnt(0)')),
                  w._push(Ins(f'v_cmp_gt_u32 vcc, {ev(who, name)}, {v(vF)}')), w._push(Ins(f's_cbranch_vccz {d}')))
    w.lg = []; w.sm = []
    if slow:
        rd(); slow()
    w.label(a); rd()
    if sleep is None: sleep = 0 if w.name == 'misc' else OPT['sleep']
    if sleep: w._push(Ins(f's_sleep {sleep}'))
    w._push(Ins(f's_sub_u32 {s(sSP)}, {s(sSP)}, 1')); w._push(Ins(f's_cbranch_scc0 {a}'))
    w._push(Ins(f's_mov_b32 {s(sSP)}, 0'))
    w.label(d)

def publish(w, n):
    w.e(f'v_mov_b32 {v(vOne)}, {n}'); w.e(f'ds_write_b32 {v(vMy)}, {v(vOne)}')

sTab, vZ = 4, 28
def table_base(w):
    w.e(f's_add_u32 {s(sTab)}, s4, Ltab-Lpc'); w.e(f's_addc_u32 {s(sTab+1)}, s5, 0'); w.e(f'v_mov_b32 {v(vZ)}, 0')
def publish_dma(w, n, blk, sreg=None):
    if sreg is None: w.e(f's_mov_b32 m0, {blk - 4 * n}')
    else: w.e(f's_add_u32 m0, {s(sreg)}, {blk - 4 * n}')
    w.e(f'global_load_lds_dword {v(vZ)}, {s(sTab,2)} offset:{4 * n}', 'flag')

class Stamps:
    def __init__(self, w, first, n, pref): self.w, self.first, self.n, self.names, self.pref = w, first, n, [], pref
    def __call__(self, name, force=False):
        if name in self.names:
            self.w._push(Ins(f's_memtime {s(self.first + 2 * self.names.index(name), 2)}')); return
        if DIAG and (force or any(name.startswith(p) for p in self.pref)) and len(self.names) < self.n:
            if OPT['spin'] and not force:
                self.w._push(Ins(f's_mov_b32 {s(self.first + 2 * len(self.names))}, {s(sSP)}')); self.names.append(name); return
            self.w._push(Ins(f'{"s_memrealtime" if OPT["rt"] or name.startswith("rt") else "s_memtime"} {s(self.first + 2 * len(self.names), 2)}')); self.names.append(name)
    def dump(self):
        if not DIAG: return
        w = self.w
        w._push(Ins('s_waitcnt lgkmcnt(0)'))
        for i in range(len(self.names)): w.e(f'v_writelane_b32 v2, {s(self.first+2*i)}, {i}')
        w.e('v_mbcnt_lo_u32_b32 v1, -1, 0'); w.e('v_lshlrev_b32 v1, 2, v1'); w.e('s_lshl_b32 s6, s2, 9'); w.e('s_lshl_b32 s7, s3, 6'); w.e('s_add_u32 s6, s6, s7'); w.e(f's_add_u32 s6, s6, {WS_DIAG}')
        w.e('s_mov_b64 exec, 0xffff'); w.e(f'buffer_store_dword v2, v1, {s(R_WS,4)}, s6 offen')

def prologue():
    w = Wave('pro')
    w.e('s_cmp_ge_u32 s2, 256'); w.e('s_cbranch_scc1 Lend')
    w.e('s_load_dwordx16 s[8:23], s[0:1], 0'); w.e('s_load_dwordx8 s[24:31], s[0:1], 64')
    w.e('s_getpc_b64 s[4:5]'); w.label('Lpc')
    w.e('v_readfirstlane_b32 s3, v0'); w.e(f'v_lshlrev_b32 {v(vMy)}, 2, v0'); w.e('v_and_b32 v0, 63, v0')
    w.e(f's_lshr_b32 {s(sIDX)}, s2, 3'); w.e('s_lshr_b32 s3, s3, 6')
    if OPT['codepf']:
        w.e(f's_lshl_b32 s6, {s(sIDX)}, 3'); w.e('s_add_u32 s6, s6, s3'); w.e('s_lshl_b32 s6, s6, 8')
        w.e('v_lshl_add_u32 v1, v0, 7, s6'); w.e('v_cmp_gt_u32 vcc, Lend-Lpc, v1'); w.e('s_and_b64 exec, vcc, 3')
        sk = lab('cp'); w.e(f's_cbranch_execz {sk}'); w.e('global_load_dword v255, v1, s[4:5]'); w.label(sk); w.e('s_mov_b64 exec, -1')
    w.e(f'v_add_u32 {v(vMy)}, {FL}, {v(vMy)}'); w.e(f'v_mov_b32 {v(vOne)}, 0'); w.e(f'ds_write_b32 {v(vMy)}, {v(vOne)}')
    w.e(f's_and_b32 {s(sX)}, s2, 7'); w.e(f's_and_b32 {s(sCS)}, {s(sIDX)}, 3'); w.e('s_and_b32 s6, s2, 1'); w.e('s_lshl_b32 s6, s6, 2'); w.e(f's_add_u32 {s(sCS)}, {s(sCS)}, s6')
    w.e(f's_lshr_b32 s6, {s(sIDX)}, 2'); w.e(f's_and_b32 {s(sR64)}, s2, 6'); w.e(f's_lshl_b32 {s(sR64)}, {s(sR64)}, 2'); w.e(f's_add_u32 {s(sR64)}, {s(sR64)}, s6')
    w.e(f'v_lshlrev_b32 {v(vChk)}, 2, v0'); w.e(f'v_add_u32 {v(vChk)}, {FL}, {v(vChk)}'); w.e(f's_mov_b32 {s(sSP)}, {LSPIN}')
    w.e('s_and_b32 s6, s3, 6'); w.e('s_cmp_eq_u32 s6, 4'); w.e('s_cbranch_scc1 Ldma')
    w._push(Ins('s_waitcnt lgkmcnt(0)')); w._push(Ins('s_barrier'))
    w.e('s_cmp_eq_u32 s3, 7'); w.e('s_cbranch_scc1 Lmisc')
    w.e('s_cmp_eq_u32 s3, 6'); w.e('s_cbranch_scc1 Lsync')
    w.e('s_branch Lcomp')
    return w

def fork(pro, name, label):
    w = Wave(name); w.vm = list(pro.vm); w.sm = list(pro.sm); w.lg = list(pro.lg); w.hist = list(pro.hist)
    if name != 'dma': w.sm = []; w.lg = []
    w.label(label)
    return w

def p4_ids(w):
    w.e(f's_cmp_lt_u32 {s(sIDX)}, 28'); w.e(f's_cselect_b32 {s(sV4)}, 1, 0'); w.e('s_cselect_b32 s6, 0, 4')
    w.e(f's_sub_u32 {s(sJ)}, {s(sIDX)}, s6')
    w.e(f's_mul_i32 s6, {s(sJ)}, 37'); w.e('s_lshr_b32 s6, s6, 8'); w.e('s_mul_i32 s7, s6, 7'); w.e(f's_sub_u32 {s(sJ)}, {s(sJ)}, s7')
    w.e(f's_and_b32 {s(sRB128)}, s2, 6'); w.e(f's_lshl_b32 {s(sRB128)}, {s(sRB128)}, 1'); w.e(f's_add_u32 {s(sRB128)}, {s(sRB128)}, s6')
    w.e('s_and_b32 s6, s2, 1'); w.e('s_mul_i32 s6, s6, 7'); w.e(f's_add_u32 {s(sJ)}, {s(sJ)}, s6')
    w.e(f's_and_b32 {s(sQB)}, {s(sIDX)}, 7'); w.e(f's_lshr_b32 s6, {s(sIDX)}, 3'); w.e(f's_lshl_b32 {s(sHD)}, {s(sX)}, 2'); w.e(f's_add_u32 {s(sHD)}, {s(sHD)}, s6')

def role_dma(pro):
    w = fork(pro, 'dma', 'Ldma')
    st = Stamps(w, 8, 12, CST); w.st = st
    R_X, R_W1, R_QKV, R_W2, R_W3, R_WO, R_W4 = 40, 44, 48, 52, 56, 60, 64
    sD, sM0, sOff, sXb, sCol, sCol3, sT = 84, 85, 86, 87, 88, 89, 90
    vXo, vW1k, vW3k, vW35, vA, vB, vC = 4, 8, 12, 16, 20, 21, 22
    vLin = [1, 2, 3]
    if OPT['dprio']: w.e(f's_setprio {OPT["dprio"]}')
    w.e(f's_sub_u32 {s(sD)}, s3, 4'); w.e(f's_lshl_b32 {s(sM0)}, {s(sD)}, 12')
    w.e(f'v_lshrrev_b32 {v(vA)}, 3, v0'); w.e(f's_lshl_b32 {s(sT)}, {s(sD)}, 5'); w.e(f'v_add_u32 {v(vA)}, {s(sT)}, {v(vA)}')
    w.e(f'v_and_b32 {v(vB)}, 7, v0')
    w.e(f'v_lshrrev_b32 {v(vC)}, 4, v0'); w.e(f'v_xor_b32 {v(vC)}, {v(vC)}, {v(vB)}'); w.e(f'v_lshlrev_b32 {v(vC)}, 4, {v(vC)}')
    w.e(f'v_lshl_add_u32 {v(vXo)}, {v(vA)}, 10, {v(vC)}'); w.e(f'v_xor_b32 {v(vXo+1)}, 64, {v(vXo)}'); w.e(f'v_add_u32 {v(vXo+1)}, 7168, {v(vXo+1)}')
    w.e(f'v_add_u32 {v(vXo+2)}, 14336, {v(vXo)}'); w.e(f'v_add_u32 {v(vXo+3)}, 14336, {v(vXo+1)}')
    w.e(f'v_bfe_u32 {v(vC)}, v0, 4, 1'); w.e(f'v_lshlrev_b32 {v(vC)}, 2, {v(vC)}'); w.e(f'v_xor_b32 {v(vC)}, {v(vC)}, {v(vB)}'); w.e(f'v_lshlrev_b32 {v(vC)}, 4, {v(vC)}')
    def voffs(r, pitch):
        w.e(f'v_mul_u32_u24 {v(r)}, {pitch}, {v(vA)}'); w.e(f'v_add_u32 {v(r)}, {v(r)}, {v(vC)}')
        for i in range(1, 4): w.e(f'v_add_u32 {v(r+i)}, {i * (8 * pitch - 1024)}, {v(r)}')
    voffs(vW1k, 1024)
    w.e(f's_lshl_b32 {s(sXb)}, {s(sR64)}, 16'); w.e(f's_lshl_b32 {s(sCol)}, {s(sCS)}, 7')
    N = [64]; sFl = 91
    table_base(w); w.e(f's_lshl_b32 {s(sFl)}, {s(sD)}, 8')
    w.waitcnt(lg=0); w.bar('init')
    srd(w, R_X, P_X, 2 * MB); srd(w, R_W1, P_W1, 512 * KB)
    def pace(): w.waitcnt(vm=N[0] - 4)
    def done(tag): publish_dma(w, D_IDX[tag], FL + 1024, sFl)
    def req(who, name): lwait(w, who, name)
    def ld(voff, r, base, add, lds, tag, reg=None):
        if reg is None: w.e(f's_add_u32 m0, {s(sM0)}, {lds}')
        w.e(f's_add_u32 {s(sOff)}, {s(base)}, {add}')
        pace()
        for i in range(4):
            if reg is None: w.e(f'buffer_load_dwordx4 {v(voff+i)}, {s(r,4)}, {s(sOff)} offen offset:{1024*i} lds', tag)
            else: w.e(f'buffer_load_dwordx4 {v(reg+4*i,4)}, {v(voff+i)}, {s(r,4)}, {s(sOff)} offen offset:{1024*i}', tag)
    def fill_h(c):
        ld(vXo, R_X, sXb, c * 128, SL(c), f'f{c}')
        ld(vW1k, R_W1, sCol, 64 * c * 1024, SL(c) + 8192, f'f{c}')
        done(f'f{c}')
    def fill_w(tag, slot, voff, r, base, col, pitch, rows, reg=None):
        for n in range(2): ld(voff, r, base, col + rows(n) * pitch, SL(slot) + n * 8192, tag, None if reg is None else reg + 16 * n)
        if reg is None: done(tag)
    def fill(t):
        if t < 8: fill_h(t)
        elif t < 20:
            if t == 9:
                w.e(f's_add_u32 {s(sT)}, {s(sXb)}, {s(sCol)}'); ld(vXo, R_X, sT, 0, L_Q, 'f9')
            fill_w(f'f{t}', t % 9, vW3k, R_QKV, sCol, ((t - 8) // 4) * 1024, 3072, lambda n: 128 * ((t - 8) % 4) + 64 * n)
        else: fill_w(f'f{t}', S_W2[t - 20], vW1k, R_W2, sCol, 0, 1024, lambda n: 128 * (t - 20) + 64 * n)
    for t in range(3): fill(t)
    voffs(vW3k, 3072); voffs(vW35, 3584)
    srd(w, R_QKV, P_WQKV, 1536 * KB); srd(w, R_W2, P_W2, 512 * KB); srd(w, R_W3, P_W3, 1792 * KB)
    srd(w, R_WO, P_WO, 512 * KB); srd(w, R_W4, P_W4, 1792 * KB)
    if DIAG: srd(w, R_WS, P_WS, WS_END)
    p4_ids(w); w.e(f's_lshl_b32 {s(sCol3)}, {s(sJ)}, 8')
    w.e(f'v_lshl_add_u32 {v(vLin[0])}, v0, 4, {s(sM0)}'); w.e(f'v_add_u32 {v(vLin[1])}, 0x10000, {v(vLin[0])}'); w.e(f'v_add_u32 {v(vLin[2])}, 0x20000, {v(vLin[0])}')
    w.e(f'v_add_u32 {v(vMy)}, {s(sFl)}, {v(vChk)}'); w.e(f'v_add_u32 {v(vMy)}, 1024, {v(vMy)}')
    N[0] = OPT['nfl']
    for t in range(3, 24):
        if t in (9, 13, 17, 21): req('C', {9: 'c3', 13: 'hx', 17: 'c11', 21: 'hdr'}[t])
        fill(t); st(f'df{t:02d}')
    st('d_w2')
    w3 = lambda p, i: fill_w(f'w3{p}{i}', (S_W3A, S_W3B)[p][i], vW35, R_W3, sCol3, 128 * p, 3584, lambda n: 128 * i + 64 * n)
    wo = lambda i: fill_w(f'wo{i}', S_WO[i], vW1k, R_WO, sCol, 0, 1024, lambda n: 128 * i + 64 * n)
    STG = lambda i: 32 + 32 * (i - 1)
    def w4(i, staged=False): fill_w(f'w4_{i}', S_W4[i], vW1k, R_W4, sCol, 0, 1024,
                                    lambda n: 128 * (2 * (i % 7) + n) + 64 * (i // 7), STG(i) if staged else None)
    def unstage(i):
        for n in range(8):
            a = SL(S_W4[i]) + (n >> 2) * 8192 + (n & 3) * 1024
            w.e(f'ds_write_b128 {v(vLin[a >> 16])}, {v(STG(i) + 4 * n, 4)} offset:{a & 0xffff}')
        w.wait_vm_tag('flag'); publish(w, D_IDX[f'w4_{i}'])
    NS = OPT['stage']
    sk, sj = lab('sp'), lab('sj')
    PRE = min(OPT['pre'], NS)
    w.e(f's_cmp_eq_u32 {s(sV4)}, 0'); w.e(f's_cbranch_scc1 {sk}')
    req('C', 'hl'); w3(0, 0)
    req('C', 'x2w'); req('Y', 'kvi'); w3(0, 1); w3(0, 2); w3(0, 3); w3(1, 0)
    req('C', 'x1dr'); w3(1, 1)
    for i in range(1, PRE + 1): w4(i, True)
    st('d_pre')
    req('C', 'att'); w3(1, 2); w3(1, 3)
    w.label(sj)
    wm = w; w = Wave('dspare'); w.label(sk); wm.spare = w
    w._push(Ins('s_waitcnt vmcnt(0)'))
    req('Y', 'kvi')
    if OPT['spf']:
        w.e('s_and_b32 s6, s2, 1'); w.e('s_lshl_b32 s6, s6, 9'); w.e(f'v_lshrrev_b32 {v(vA)}, 2, v0'); w.e(f'v_lshl_add_u32 {v(vA)}, {v(vA)}, 10, s6')
        w.e(f'v_and_b32 {v(vB)}, 3, v0'); w.e(f'v_lshl_add_u32 {v(vA)}, {v(vB)}, 7, {v(vA)}')
        w.e(f's_and_b32 s6, {s(sIDX)}, 3'); w.e('s_lshl_b32 s6, s6, 14'); w.e(f's_lshl_b32 s7, {s(sD)}, 16'); w.e(f's_add_u32 {s(sT)}, s6, s7')
        w.e(f's_lshl_b32 s7, {s(sD)}, 17'); w.e(f's_add_u32 {s(sXb)}, s6, s7')
        order = [('4', 1), ('4', 2), ('o', 0), ('4', 3), ('o', 1), ('o', 2), ('o', 3), ('4', 0)] + [('4', i) for i in range(4, 14)]
        for k, (m_, i) in enumerate(order):
            w.waitcnt(vm=2)
            if m_ == 'o': w.e(f's_add_u32 {s(sOff)}, {s(sT)}, {128 * i * 1024}')
            else: w.e(f's_add_u32 {s(sOff)}, {s(sXb)}, {(256 * (i % 7) + 64 * (i // 7)) * 1024}')
            w.e(f'buffer_load_dword {v(224 + k)}, {v(vA)}, {s(R_WO if m_ == "o" else R_W4, 4)}, {s(sOff)} offen')
    for i in range(1, PRE + 1): w4(i, True)
    w.waitcnt(vm=0)
    req('C', 'att'); w.e(f's_branch {sj}')
    w = wm
    wo(0)
    st('d_wo0')
    MID = min(NS, PRE + 2)
    for i in range(PRE + 1, MID + 1): w4(i, True)
    req('C', 'p4a'); wo(1); wo(2); wo(3); w4(0)
    for i in range(MID + 1, NS + 1): w4(i, True)
    st('d_stg')
    free = ['p4b'] * 4 + ['o1', 'o1', 'o3', 'o3', 'g1', 'g1', 'g3', 'g3', 'g5']
    for i in range(1, 14):
        if i == 1 or free[i - 1] != free[i - 2]: req('C', free[i - 1])
        if i <= NS: unstage(i)
        else: w.waitcnt(lg=0); w4(i)
    w.waitcnt(vm=0)
    st('d_end'); st.dump()
    w.e('s_endpgm')
    return w

def role_sync(pro):
    w = fork(pro, 'sync', 'Lsync')
    st = Stamps(w, 76, 12, CST); w.st = st
    srd(w, R_WS, P_WS, WS_END)
    sk = lab('nz'); sOne = 60
    w.e('s_cmp_ge_u32 s2, 4'); w.e(f's_cbranch_scc1 {sk}')
    w.e('v_lshlrev_b32 v1, 4, v0'); w.e(f's_mov_b32 {s(sOne)}, 1')
    for i in range(4): w.e(f'v_mov_b32 {v(4+i)}, 0')
    w.e('s_lshl_b32 s7, s2, 13'); w.e('s_add_u32 s6, s7, 4096')
    for i in range(8): w.e(f'buffer_store_dwordx4 v[4:7], v1, {s(R_WS,4)}, {"s6" if i >= 4 else "s7"} offen offset:{(i & 3) * 1024} sc1')
    w.waitcnt(vm=0)
    w.e(f's_atomic_add {s(sOne)}, {s(P_DBG,2)}, 0')
    w.label(sk)
    bM, sKlo, sKhi, sStep, sT, sOff, bA, b4 = 40, 42, 43, 44, 45, 46, 48, 50
    vLin, vVlo, vKlo = 1, 2, 8
    p4_ids(w)
    w.e(f'v_add_u32 {v(vMy)}, {BLK["Y"]}, {v(vChk)}'); table_base(w)
    for dst, hi, sh, lo in ((bM, sR64, 2, sCS), (bA, sQB, 4, sHD), (b4, sRB128, 3, sJ)):
        w.e(f's_lshr_b32 s6, {s(lo)}, 1'); w.e(f's_lshl_b32 s7, {s(hi)}, {sh}'); w.e('s_add_u32 s6, s6, s7'); w.e('s_lshl_b32 s6, s6, 7')
        w.e(f's_add_u32 {s(dst)}, {s(P_WS)}, s6'); w.e(f's_addc_u32 {s(dst+1)}, {s(P_WS+1)}, 0')
    w.e(f'v_lshlrev_b32 {v(vLin)}, 4, v0')
    w.e('v_lshrrev_b32 v3, 5, v0'); w.e('v_lshlrev_b32 v3, 9, v3'); w.e(f'v_mov_b32 {v(vVlo)}, 0x40000000'); w.e(f'v_add_u32 v12, 4096, {v(vLin)}')
    w.e(f's_cmp_eq_u32 {s(sQB)}, 0'); w.e('s_cselect_b64 vcc, -1, 0'); w.e(f's_cselect_b32 {s(sStep)}, 0, 4096'); w.e(f's_cselect_b32 {s(sT)}, 0, 8192')
    for i in range(4): w.e(f'v_add_u32 {v(vKlo+i)}, {4096 - 1024 * i}, v3'); w.e(f'v_cndmask_b32 {v(vKlo+i)}, v12, {v(vKlo+i)}, vcc')
    w.e(f'v_cndmask_b32 {v(vVlo)}, v12, {v(vVlo)}, vcc')
    w.e(f's_lshl_b32 {s(sKhi)}, {s(sHD)}, 16'); w.e(f's_lshl_b32 {s(sKlo)}, {s(sQB)}, 13'); w.e(f's_add_u32 {s(sKhi)}, {s(sKhi)}, {s(sKlo)}')
    w.e(f's_sub_u32 {s(sKlo)}, {s(sKhi)}, {s(sT)}')
    if OPT['dprio']: w.e(f's_setprio {OPT["dprio"]}')
    lwait(w, 'C', 'hdr')
    gpoll(w, P_DBG, 0, 4, 64, True)
    gpoll(w, bM, 16, 16, 64); publish(w, ev('Y', 'h')); st('y_h')
    gpoll(w, bA, 0, 8, 64); st('y_qk')
    lwait(w, 'C', 'vdone')
    def lin(wsoff, lds, tag):
        for g in range(2):
            w.e(f's_mov_b32 m0, {lds + 4096 * g}'); w.e(f's_add_u32 {s(sOff)}, {s(sKhi)}, {wsoff + 4096 * g}')
            for i in range(4): w.e(f'buffer_load_dwordx4 {v(vLin)}, {s(R_WS,4)}, {s(sOff)} offen offset:{1024 * i} sc1 lds', tag)
    def low(wsoff, lds, vlo, tag):
        w.e(f's_add_u32 {s(sOff)}, {s(sKlo)}, {wsoff - 4096}')
        for g in range(2):
            w.e(f's_mov_b32 m0, {lds + 4096 * g}')
            if g: w.e(f's_add_u32 {s(sOff)}, {s(sOff)}, {s(sStep)}')
            for i in range(4): w.e(f'buffer_load_dwordx4 {v(vlo(i))}, {s(R_WS,4)}, {s(sOff)} offen offset:{1024 * i} sc1 lds', tag)
    lin(WS_Q, L_Q, 'kq'); low(WS_K, SL(S_K), lambda i: vKlo + i, 'kq')
    lin(WS_K, SL(S_K) + 8192, 'kq'); publish_dma(w, ev('Y', 'kq'), FL + BLK['Y']); st('y_ki')
    gpoll(w, bA, 24, 8, 64); st('y_kv')
    low(WS_V, SL(S_V), lambda i: vVlo, 'v'); publish_dma(w, ev('Y', 'kvi'), FL + BLK['Y'])
    lin(WS_V, SL(S_V) + 8192, 'v'); publish_dma(w, ev('Y', 'v'), FL + BLK['Y'])
    w.waitcnt(vm=0); st('y_kw')
    gpoll(w, b4, 4, 16, 64); publish(w, ev('Y', 'x1')); st('y_x1')
    gpoll(w, bM, 20, 32, 64); publish(w, ev('Y', 'o')); st('y_o')
    gpoll(w, bM, 8, 14, 64); publish(w, ev('Y', 'a')); st('y_a')
    gpoll(w, bM, 12, 14, 64); publish(w, ev('Y', 'b')); st('y_b')
    st.dump()
    w.e('s_endpgm')
    return w

def role_misc(pro):
    w = fork(pro, 'misc', 'Lmisc')
    st = Stamps(w, 76, 12, CST); w.st = st
    R_T, R_X, R_G, R_W3, R_W4 = 40, 44, 48, 52, 44
    XG, GG, WG_, ACC = 32, 64, 96, 128
    sC = 59
    w.e('s_and_b32 s6, s2, 1'); w.e('s_lshl_b32 s6, s6, 9'); w.e('v_lshrrev_b32 v1, 2, v0'); w.e('v_lshl_add_u32 v1, v1, 10, s6'); w.e('v_and_b32 v2, 3, v0'); w.e('v_lshl_add_u32 v1, v2, 7, v1')
    w.e('v_lshrrev_b32 v2, 3, v0'); w.e('v_and_b32 v3, 7, v0'); w.e('v_lshlrev_b32 v3, 4, v3')
    w.e('v_mul_u32_u24 v5, 3584, v2'); w.e('v_add_u32 v5, v5, v3')
    def pick(cmp_, pa, na, pb, nb):
        w.e(cmp_); w.e(f's_cselect_b32 {s(R_T)}, {s(pa)}, {s(pb)}'); w.e(f's_cselect_b32 {s(R_T+1)}, {s(pa+1)}, {s(pb+1)}')
        w.e(f's_mov_b32 s7, {nb}'); w.e(f's_cselect_b32 {s(R_T+2)}, {na}, s7')
    w.e(f's_mov_b32 {s(R_T+3)}, 0x20000')
    w.e('s_and_b32 s6, s2, 6'); w.e('s_lshl_b32 s6, s6, 4'); w.e(f's_add_u32 {s(sC)}, s6, {s(sIDX)}')
    w.e('s_bitcmp1_b32 s2, 0'); w.e('s_cselect_b32 s58, 0x40000000, 0')
    if OPT['r3']:
        w.e('v_lshlrev_b32 v10, 10, v0'); w.e('v_add_u32 v10, 384, v10')
        pick(f's_cmp_lt_u32 {s(sIDX)}, 8', P_W1, 512 * KB, P_WQKV, 1536 * KB); w.e('s_cselect_b32 s6, 0, 8')
        w.e(f's_and_b32 {s(R_T+1)}, {s(R_T+1)}, 0xffff'); w.e(f's_sub_u32 s6, {s(sIDX)}, s6'); w.e('s_lshl_b32 s6, s6, 16'); w.e('s_add_u32 s6, s6, s58')
        w.e(f'buffer_load_dword v251, v10, {s(R_T,4)}, s6 offen')
    srd(w, R_X, P_X, 2 * MB); srd(w, R_G, P_GW, 1024)
    w.e(f's_lshl_b32 s6, {s(sR64)}, 3'); w.e(f's_add_u32 s60, s6, {s(sCS)}'); w.e('s_lshl_b32 s6, s60, 13')
    w.e('v_lshlrev_b32 v4, 4, v0'); w.e('s_add_u32 s7, s6, 4096')
    for i in range(8): w.e(f'buffer_load_dwordx4 {v(XG+4*i,4)}, v4, {s(R_X,4)}, {"s7" if i >> 2 else "s6"} offen offset:{1024*(i&3)}')
    if OPT['touch']:
        pick(f's_cmp_lt_u32 {s(sC)}, 32', P_W1, 512 * KB, P_WQKV, 1536 * KB); w.e('s_cselect_b32 s6, 0, 32')
        w.e(f's_and_b32 {s(R_T+1)}, {s(R_T+1)}, 0xffff'); w.e(f's_sub_u32 s6, {s(sC)}, s6'); w.e('s_lshl_b32 s6, s6, 14')
        w.e(f'buffer_load_dword v254, v1, {s(R_T,4)}, s6 offen')
    w.e(f'buffer_load_dwordx4 {v(GG,4)}, v4, {s(R_G,4)}, 0 offen')
    srd(w, R_W3, P_W3, 1792 * KB); srd(w, R_W4, P_W4, 1792 * KB); srd(w, R_WS, P_WS, WS_END)
    p4_ids(w)
    w.e(f'v_add_u32 {v(vMy)}, {BLK["M"]}, {v(vChk)}')
    w.e(f's_mul_i32 s61, {s(sC)}, 4682'); w.e('s_lshr_b32 s61, s61, 16'); w.e('s_mul_i32 s6, s61, 14'); w.e(f's_sub_u32 s62, {s(sC)}, s6')
    w.e('s_and_b32 s6, s2, 1'); w.e('s_mul_i32 s6, s6, 14'); w.e('s_add_u32 s62, s62, s6')
    GA = 72
    for i in range(8): w.e(f'v_mov_b32 {v(GA+i)}, 0')
    for d in range(4):
        for i in range(8): w.e(f'v_dot2c_f32_bf16 {v(GA+i)}, {v(XG+4*i+d)}, {v(GG+d)}')
    for i in range(4): w.e(f'v_permlane32_swap_b32 {v(GA+i)}, {v(GA+4+i)}')
    for i in range(4): w.e(f'v_add_f32 {v(GA+i)}, {v(GA+i)}, {v(GA+4+i)}')
    for i in range(2): w.e(f'v_permlane16_swap_b32 {v(GA+i)}, {v(GA+2+i)}')
    for i in range(2): w.e(f'v_add_f32 {v(GA+i)}, {v(GA+i)}, {v(GA+2+i)}')
    for i in range(2): w.e(f'v_add_f32_dpp {v(GA+i)}, {v(GA+i)}, {v(GA+i)} row_ror:8 row_mask:0xf bank_mask:0xf')
    w.e('s_mov_b32 vcc_lo, 0xff00ff00'); w.e('s_mov_b32 vcc_hi, 0xff00ff00'); w.e(f'v_cndmask_b32 v6, {v(GA)}, {v(GA+1)}, vcc')
    for m in ('quad_perm:[1,0,3,2]', 'quad_perm:[2,3,0,1]', 'row_half_mirror'):
        w.e(f'v_add_f32_dpp v6, v6, v6 {m} row_mask:0xf bank_mask:0xf')
    w.e(f'v_mul_f32 v6, {fl(-LOG2E)}, v6'); w.e('v_exp_f32 v6, v6'); w.e('v_add_f32 v6, 1.0, v6'); w.e('v_rcp_f32 v6, v6')
    w.e('v_lshlrev_b32 v7, 2, v2'); w.e('s_lshl_b32 s6, s60, 5'); w.e(f's_add_u32 s6, s6, {WS_G}')
    w.e('s_mov_b32 s7, 0x01010101'); w.e('s_mov_b32 exec_lo, s7'); w.e('s_mov_b32 exec_hi, s7')
    w.e(f'buffer_store_dword v6, v7, {s(R_WS,4)}, s6 offen sc1')
    w.e('s_mov_b64 exec, -1')
    sOne, bH0, bH1, bQ0, bQ1, bX, bO, bH3, sR2 = 63, 8, 10, 14, 16, 64, 66, 68, 70
    def base(dst):
        w.e('s_lshl_b32 s6, s6, 7'); w.e(f's_add_u32 {s(dst)}, {s(P_WS)}, s6'); w.e(f's_addc_u32 {s(dst+1)}, {s(P_WS+1)}, 0')
    w.e(f's_mov_b32 {s(sOne)}, 1')
    w.e(f's_lshl_b32 s6, {s(sR64)}, 2'); base(bH0)
    w.e(f's_bitcmp1_b32 {s(sCS)}, 1'); w.e('s_cselect_b32 s6, 31, 1'); w.e(f's_add_u32 s6, s6, {s(sR64)}'); w.e('s_and_b32 s6, s6, 31'); w.e('s_lshl_b32 s6, s6, 2'); base(bH1)
    w.e(f's_lshr_b32 s7, {s(sR64)}, 2'); w.e('s_lshl_b32 s7, s7, 4'); w.e(f's_lshl_b32 s39, {s(sCS)}, 1'); w.e('s_add_u32 s6, s7, s39'); base(bQ0)
    w.e('s_add_u32 s6, s7, 16'); w.e('s_and_b32 s6, s6, 0x70'); w.e('s_add_u32 s6, s6, s39'); base(bQ1)
    w.e(f's_lshr_b32 s6, {s(sR64)}, 1'); w.e('s_lshl_b32 s6, s6, 3'); base(bX)
    w.e(f's_lshl_b32 s6, {s(sQB)}, 4'); base(bO)
    w.e(f's_lshl_b32 s6, {s(sRB128)}, 3'); base(bH3)
    def mail(b, n, dw, val=sOne, n0=0):
        for i in range(n0, n0 + n): w.e(f's_atomic_add {s(val)}, {s(b,2)}, {128*i + 4*dw}')
    lwait(w, 'D', 'f2')
    w.e(f's_mul_i32 s6, s61, {64*3584}'); w.e('s_lshl_b32 s7, s62, 7'); w.e('s_add_u32 s6, s6, s7')
    for i in range(8):
        w.e(f'buffer_load_dwordx4 {v(WG_+4*i,4)}, v5, {s(R_W3,4)}, s6 offen')
        if i < 7: w.e(f's_add_u32 s6, s6, {8*3584}')
    for i in range(8):
        for d in range(4):
            src = WG_ + 4 * i + d
            if i == 0:
                w.e(f'v_lshlrev_b32 {v(ACC+2*d)}, 16, {v(src)}'); w.e(f'v_and_b32 {v(ACC+2*d+1)}, 0xffff0000, {v(src)}')
            else:
                w.e(f'v_lshlrev_b32 v8, 16, {v(src)}'); w.e(f'v_and_b32 v9, 0xffff0000, {v(src)}')
                w.e(f'v_add_f32 {v(ACC+2*d)}, {v(ACC+2*d)}, v8'); w.e(f'v_add_f32 {v(ACC+2*d+1)}, {v(ACC+2*d+1)}, v9')
    if OPT['touch']:
        pick(f's_cmp_lt_u32 {s(sC)}, 32', P_W2, 512 * KB, P_WO, 512 * KB); w.e('s_cselect_b32 s6, 0, 32')
        pick(f's_cmp_lt_u32 {s(sC)}, 64', R_T, 512 * KB, P_W4, 1792 * KB); w.e('s_cselect_b32 s6, s6, 64')
        w.e(f's_and_b32 {s(R_T+1)}, {s(R_T+1)}, 0xffff'); w.e(f's_sub_u32 s6, {s(sC)}, s6'); w.e('s_lshl_b32 s6, s6, 14')
        w.e(f'buffer_load_dword v253, v1, {s(R_T,4)}, s6 offen')
    for c in range(8): w.e(f'v_add_f32_dpp {v(ACC+c)}, {v(ACC+c)}, {v(ACC+c)} row_ror:8 row_mask:0xf bank_mask:0xf')
    for op in ('v_permlane16_swap_b32', 'v_permlane32_swap_b32'):
        for c in range(8): w.e(f'v_mov_b32 {v(ACC+8+c)}, {v(ACC+c)}')
        for c in range(8): w.e(f'{op} {v(ACC+c)}, {v(ACC+8+c)}')
        for c in range(8): w.e(f'v_add_f32 {v(ACC+c)}, {v(ACC+c)}, {v(ACC+8+c)}')
    w.e('v_lshlrev_b32 v7, 5, v0'); w.e('s_mul_i32 s6, s61, 7168'); w.e('s_lshl_b32 s7, s62, 8'); w.e('s_add_u32 s6, s6, s7'); w.e(f's_add_u32 s6, s6, {WS_CSP}')
    w.e(f's_cmp_lt_u32 {s(sC)}, 112'); w.e('s_cselect_b32 s71, 1, 0'); w.e(f's_cselect_b32 s6, s6, {0x40000000}')
    w.e('s_mov_b64 exec, 0xff')
    w.e(f'buffer_store_dwordx4 {v(ACC,4)}, v7, {s(R_WS,4)}, s6 offen sc1'); w.e(f'buffer_store_dwordx4 {v(ACC+4,4)}, v7, {s(R_WS,4)}, s6 offen offset:16 sc1')
    w.e('s_mov_b64 exec, -1')
    w.waitcnt(vm=0)
    if OPT['touch']:
        w.e(f's_add_u32 s6, {s(sC)}, 64'); w.e('s_lshl_b32 s6, s6, 14')
        w.e(f'buffer_load_dword v252, v1, {s(R_W4,4)}, s6 offen')
    gpoll(w, P_DBG, 0, 4, 4, True)
    w.e('s_lshr_b32 s6, s62, 1'); w.e('s_lshl_b32 s6, s6, 7'); w.e(f's_add_u32 s6, s6, {CNT_CS}')
    w.e(f's_atomic_add s71, {s(P_WS,2)}, s6')
    st('m_cs')
    if OPT['dprio']: w.e(f's_setprio {OPT["dprio"]}')
    if OPT['r3']:
        srd(w, R_T, P_W2, 512 * KB); w.e(f's_lshl_b32 s6, {s(sIDX)}, 14'); w.e('s_add_u32 s6, s6, s58')
        w.e('s_bitcmp1_b32 s2, 0'); w.e('s_mov_b32 s7, 0x4410'); w.e('s_cselect_b32 s7, 0x6532, s7')
        w.e('v_and_b32 v8, 3, v0'); w.e('v_lshlrev_b32 v8, 2, v8'); w.e('v_bfe_u32 v8, s7, v8, 4'); w.e('v_lshrrev_b32 v9, 2, v0')
        w.e('v_mul_u32_u24 v9, 7168, v9'); w.e('v_lshl_add_u32 v8, v8, 10, v9'); w.e(f's_mul_i32 s7, {s(sIDX)}, {8*7168}')
        w.e('s_mov_b64 exec, 0xffff'); w.e(f'buffer_load_dword v251, v10, {s(R_T,4)}, s6 offen')
        w.e('s_mov_b32 exec_lo, -1'); w.e(f'buffer_load_dword v250, v8, {s(R_W3,4)}, s7 offen offset:384'); w.e('s_mov_b64 exec, -1')
    lwait(w, 'C', 'hdr'); mail(bH0, 4, 4); mail(bH1, 4, 4); st('m_h')
    w.e('v_lshrrev_b32 v7, 4, v0'); w.e('v_lshlrev_b32 v7, 9, v7'); w.e('v_and_b32 v8, 15, v0'); w.e('v_lshl_add_u32 v7, v8, 4, v7'); w.e(f'v_add_u32 v7, {SL(S_ONE)}, v7')
    w.e(f's_cmp_eq_u32 {s(sQB)}, 0'); w.e('s_cselect_b32 s6, 0, 0x3f803f80')
    for i in range(4): w.e(f'v_mov_b32 {v(12+i)}, s6'); w.e(f'v_mov_b32 {v(16+i)}, 0x3f803f80')
    lwait(w, 'C', 'vdone'); mail(bQ0, 2, 0); mail(bQ1, 2, 0); st('m_q')
    lwait(w, 'C', 'qdr'); mail(bQ0, 2, 6); mail(bQ1, 2, 6); st('m_v')
    for i in range(8): w.e(f'ds_write_b128 v7, {v(12 if i < 4 else 16, 4)} offset:{2048*i}')
    publish(w, ev('M', 'one'))
    w.e(f's_lshl_b32 s6, {s(sJ)}, 7'); w.e(f's_add_u32 s6, s6, {CNT_CS}')
    gpoll(w, P_WS, 's6', 16, 4, True)
    w.e('v_lshlrev_b32 v7, 3, v0'); w.e(f's_lshl_b32 s6, {s(sJ)}, 9'); w.e(f's_add_u32 s6, s6, {WS_CSP}')
    for i in range(8):
        w.e(f'buffer_load_dwordx2 {v(32+2*i,2)}, v7, {s(R_WS,4)}, s6 offen sc1')
        if i < 7: w.e('s_add_u32 s6, s6, 7168')
    lwait(w, 'C', 'x1dr'); mail(bX, 7, 1); st('m_x1')
    for i in range(1, 8):
        w.e(f'v_add_f32 v32, v32, {v(32+2*i)}'); w.e(f'v_add_f32 v33, v33, {v(33+2*i)}')
    w.e(f'v_add_u32 v8, {L_CS3}, v7'); w.e('ds_write_b64 v8, v[32:33]')
    publish(w, ev('M', 'cs'))
    lwait(w, 'C', 'odr'); mail(bO, 12, 5); w.waitcnt(lg=0); mail(bO, 4, 5, sOne, 12); st('m_o')
    lwait(w, 'C', 'adr'); mail(bH3, 8, 2, sV4); st('m_a')
    lwait(w, 'C', 'bdr'); mail(bH3, 8, 3, sV4); st('m_b')
    st.dump()
    w.e('s_endpgm')
    return w

class Filler:
    def __init__(self): self.q = []
    def add(self, text, cost=4, tag=None): self.q.append((text, cost, tag))
    def call(self, f, cost=0): self.q.append((f, cost, None))
    def pull(self, w, budget):
        while self.q and budget > 0:
            t, c, tag = self.q.pop(0)
            if callable(t): t()
            else: w.e(t, tag)
            budget -= c
    def flush(self, w): self.pull(w, 1 << 30)

def role_comp(pro):
    w = fork(pro, 'comp', 'Lcomp')
    st = Stamps(w, 8, 12, CST); w.st = st
    stubs = Wave('stubs'); w.stubs = stubs
    evs = {}; w.evs = evs
    R_OUT, R_H3 = 76, 80
    MK = 40
    sRH, sC2, sRB, sA, sB, sT2, sHV, sM1, sM2, sO1, sO2, sR4 = 84, 85, 86, 87, 88, 89, 90, 92, 94, 96, 97, 98
    vL16 = 1; WA = [2, 3, 4]; WB = [5, 6, 7]; XR = 16; vG = 28
    ACC0, ACC1, CS, SQ, ONE, XA, WR, PK, vHo, vVo, vXr, vCom, vH = 32, 48, 64, 64, 88, 92, 96, 116, 124, 125, 126, 14, 15
    X = lambda f: 128 + 4 * f
    MF = 'v_mfma_f32_32x32x16_bf16'; M4 = 'v_mfma_f32_4x4x4_16b_bf16'
    def mark(name):
        if name not in evs: evs[name] = len(evs) + 1
        w.e(f'ds_add_u32 {v(vMy)}, {v(vOne)}'); w.lines[-1] += f'    ; mark {name}'
    def chk_rd(c, r=vF): w.e(f'ds_read_b32 {v(r)}, {v(vChk)} offset:{BLK[c[0]]}')
    def chk_cmp(c, r=vF): w.e(f'v_cmp_gt_u32 vcc, {ev(*c)}, {v(r)}')
    def chk_br(c):
        a, b = lab('st'), lab('bk')
        w.e(f's_cbranch_vccnz {a}'); w.lines[-1] += f'    ; need {c[0]}:{c[1]}'; w.label(b)
        stubs.label(a)
        for t in (f'ds_read_b32 v31, {v(vChk)} offset:{BLK[c[0]]}', 's_waitcnt lgkmcnt(0)', f'v_cmp_gt_u32 vcc, {ev(*c)}, v31', f's_cbranch_vccz {b}',
                  f's_sub_u32 {s(sSP)}, {s(sSP)}, 1', f's_cbranch_scc0 {a}', f's_mov_b32 {s(sSP)}, 0', f's_branch {b}'): stubs._push(Ins(t))
    def chk(c): chk_rd(c, 31); chk_cmp(c, 31); chk_br(c)
    def fchk(F, c, gap=2):
        F.call(lambda: chk_rd(c), 1000)
        for _ in range(gap - 1): F.call(lambda: None, 1000)
        F.call(lambda: chk_cmp(c), 1000); F.call(lambda: chk_br(c), 12)
    def run_steps(steps, L, fill=None, budget=16):
        def rd(i):
            steps[i]['rd']()
            for m in steps[i].get('mark', []): mark(m)
        pre = set()
        for i in range(min(L, len(steps))):
            if 'chk' in steps[i]: chk(steps[i]['chk'])
            rd(i)
        for n, sp in enumerate(steps):
            c = steps[n + L].get('chk') if n + L < len(steps) else None
            if c:
                if n + L not in pre: chk_rd(c)
                chk_cmp(c)
            sp['mm']()
            if c: chk_br(c)
            if n + L + 2 < len(steps) and 'chk' in steps[n + L + 2]: chk_rd(steps[n + L + 2]['chk']); pre.add(n + L + 2)
            if n + L < len(steps): rd(n + L)
            if 'post' in sp: sp['post']()
            busy = any(n + L + k < len(steps) and 'chk' in steps[n + L + k] for k in (1, 2, 3, 4, 5))
            if fill:
                if busy and fill.q and fill.q[0][1] == 1000 and not fill.__dict__.get('open'): continue
                fill.open = bool(fill.q) and fill.q[0][1] == 1000
                b = sp.get('budget', budget)
                while fill.q and b > 0:
                    if fill.q[0][1] == 1000 and not fill.open: break
                    b -= fill.q[0][1]; fill.pull(w, 1) if fill.q[0][1] else fill.q.pop(0)[0]()
    def tr(dst, bases, addr, second):
        for i, a in enumerate((addr, addr + second)):
            w.e(f'ds_read_b64_tr_b16 {v(dst+2*i,2)}, {v(bases[a >> 16])} offset:{a & 0xffff}')
    def windows(b):
        w.e(f'v_add_u32 {v(b[1])}, 0x10000, {v(b[0])}'); w.e(f'v_add_u32 {v(b[2])}, 0x20000, {v(b[0])}')
    srd(w, R_WS, P_WS, WS_END); srd(w, R_OUT, P_OUT, 2 * MB)
    st('rt0', True); st('start', True)
    w.e(f's_and_b32 {s(sRH)}, s3, 1'); w.e(f's_lshr_b32 {s(sC2)}, s3, 1')
    w.e(f's_lshl_b32 {s(sRB)}, {s(sR64)}, 1'); w.e(f's_add_u32 {s(sRB)}, {s(sRB)}, {s(sRH)}')
    w.e(f'v_lshlrev_b32 {v(vL16)}, 4, v0'); w.e(f'v_lshrrev_b32 {v(vH)}, 5, v0'); w.e('v_and_b32 v8, 31, v0')
    w.e(f's_lshl_b32 {s(sA)}, s3, 2'); w.e(f's_add_u32 {s(sA)}, {s(sA)}, {FL}'); w.e(f'v_add_u32 {v(vMy)}, {s(sA)}, {v(vL16)}'); w.e(f'v_mov_b32 {v(vOne)}, 1')
    w.e('v_bfe_u32 v9, v0, 2, 2'); w.e('v_and_b32 v10, 3, v0'); w.e('v_bfe_u32 v11, v0, 4, 1'); w.e('v_bfe_u32 v12, v0, 3, 1')
    w.e(f'v_lshlrev_b32 {v(vCom)}, 7, v9'); w.e(f'v_lshl_add_u32 {v(vCom)}, v10, 3, {v(vCom)}'); w.e(f'v_lshl_add_u32 {v(vCom)}, v11, 5, {v(vCom)}'); w.e(f'v_lshl_add_u32 {v(vCom)}, v12, 6, {v(vCom)}')
    w.e(f's_lshl_b32 {s(sA)}, {s(sC2)}, 6'); w.e(f'v_xor_b32 {v(WA[0])}, {s(sA)}, {v(vCom)}'); w.e(f'v_lshl_add_u32 {v(WA[0])}, {v(vH)}, 10, {v(WA[0])}'); windows(WA)
    w.e(f's_lshl_b32 {s(sA)}, {s(sRH)}, 5'); w.e(f'v_add_u32 v9, {s(sA)}, v8')
    vHk, vHc = WB[0], WB[1]
    w.e(f'v_lshlrev_b32 {v(vHk)}, 4, v9'); w.e(f'v_add_u32 {v(vHk)}, {L_HK}, {v(vHk)}')
    w.e(f's_lshl_b32 {s(sA)}, {s(sC2)}, 7'); w.e(f's_add_u32 {s(sA)}, {s(sA)}, {L_HC}'); w.e(f'v_lshl_add_u32 {v(vHc)}, {v(vH)}, 4, {s(sA)}')
    w.e('v_lshlrev_b32 v9, 7, v9'); w.e('v_bfe_u32 v10, v0, 1, 3')
    w.e(f'v_xor_b32 v12, v10, {v(vH)}'); w.e(f'v_lshl_add_u32 {v(XA)}, v12, 4, v9')
    for k in range(1, 4): w.e(f'v_xor_b32 {v(XA+k)}, {32*k}, {v(XA)}')
    w.e(f's_lshl_b32 {s(sA)}, {s(sC2)}, 2'); w.e(f'v_xor_b32 v12, {s(sA)}, v10'); w.e(f'v_lshl_add_u32 {v(vXr)}, v12, 4, v9'); w.e(f'v_lshl_add_u32 {v(vXr)}, {v(vH)}, 3, {v(vXr)}')
    w.e(f'v_add_u32 {v(vXr)}, {L_Q}, {v(vXr)}')
    for i in range(4): w.e(f'v_mov_b32 {v(ONE+i)}, 0x3f803f80')
    w.e(f's_lshr_b32 {s(sA)}, {s(sCS)}, 2'); w.e(f's_add_u32 {s(sA)}, {s(sA)}, 1'); w.e(f's_sub_u32 {s(sB)}, 0, {s(sA)}')
    w.e(f's_bitcmp1_b32 {s(sCS)}, 1'); w.e(f's_cselect_b32 {s(sA)}, {s(sB)}, {s(sA)}')
    w.e(f's_lshl_b32 {s(sB)}, {s(sRB)}, 5'); w.e(f's_add_u32 {s(sA)}, {s(sA)}, {s(sB)}'); w.e(f'v_add_u32 v9, {s(sA)}, v8')
    w.e(f's_movk_i32 {s(sA)}, 2048'); w.e(f'v_cmp_gt_u32 {s(sHV,2)}, {s(sA)}, v9')
    w.e('v_bfe_u32 v10, v9, 5, 6'); w.e('v_and_b32 v9, 31, v9'); w.e(f'v_lshlrev_b32 {v(vHo)}, 15, v10'); w.e(f'v_lshl_add_u32 {v(vHo)}, v9, 4, {v(vHo)}'); w.e(f'v_lshl_add_u32 {v(vHo)}, {v(vH)}, 9, {v(vHo)}')
    w.e('v_and_b32 v9, 15, v0'); w.e(f'v_lshlrev_b32 {v(vVo)}, 16, v11'); w.e(f'v_lshl_add_u32 {v(vVo)}, v9, 4, {v(vVo)}'); w.e(f'v_lshl_add_u32 {v(vVo)}, {v(vH)}, 8, {v(vVo)}')
    w.e('v_and_b32 v9, 1, v0'); w.e(f'v_cmp_ne_u32 {s(sM1,2)}, 0, v9'); w.e('v_and_b32 v9, 2, v0'); w.e(f'v_cmp_ne_u32 {s(sM2,2)}, 0, v9')
    w.e(f'v_lshlrev_b32 v9, 2, {v(vH)}'); w.e('v_sub_u32 v9, v8, v9')
    for r in range(16): w.e(f'v_cmp_le_i32 {s(MK+2*r,2)}, {8*(r>>2)+(r&3)}, v9')
    p4_ids(w)
    w.e(f's_lshl_b32 {s(sT2)}, {s(sCS)}, 1'); w.e(f's_add_u32 {s(sT2)}, {s(sT2)}, {s(sC2)}'); w.e(f's_lshl_b32 {s(sT2)}, {s(sT2)}, 1')
    w.e(f's_lshl_b32 {s(sO1)}, {s(sT2)}, 16'); w.e(f's_lshl_b32 {s(sA)}, {s(sRB)}, 10'); w.e(f's_add_u32 {s(sO1)}, {s(sO1)}, {s(sA)}')

    def ln_consts(E, vs, vq, K):
        E(f'v_permlane32_swap_b32 {v(vs)}, {v(vq)}'); E(f'v_add_f32 {v(vs)}, {v(vs)}, {v(vq)}'); E(f'v_mov_b32 {v(vq)}, {v(vs)}')
        E(f'v_permlane32_swap_b32 {v(vs)}, {v(vq)}')
        E(f'v_mul_f32 {v(K)}, {fl(-1/512)}, {v(vs)}'); E(f'v_mul_f32 {v(vq)}, {fl(1/512)}, {v(vq)}')
        E(f'v_fma_f32 {v(vq)}, -{v(K)}, {v(K)}, {v(vq)}'); E(f'v_max_f32 {v(vq)}, 0, {v(vq)}'); E(f'v_add_f32 {v(vq)}, {fl(1e-5)}, {v(vq)}')
        E(f'v_rsq_f32 {v(vs)}, {v(vq)}')
        E(f'v_mul_f32 {v(K+1)}, {v(vq)}, {v(vs)}'); E(f'v_mul_f32 {v(K+2)}, {fl(C0)}, {v(vs)}'); E(f'v_mul_f32 {v(vq)}, {v(vs)}, {v(vs)}')
        E(f'v_mul_f32 {v(vq)}, {v(vq)}, {v(vs)}'); E(f'v_mul_f32 {v(K+3)}, {fl(C1)}, {v(vq)}')
    def gelu_packed(acc, cs, K, pk):
        P2 = lambda r: v(r, 2)
        for p in range(8): w.e(f'v_pk_fma_f32 {P2(acc+2*p)}, {P2(cs+2*p)}, {P2(K)}, {P2(acc+2*p)} op_sel_hi:[1,0,1]')
        for p in range(8): w.e(f'v_pk_mul_f32 {P2(cs+2*p)}, {P2(acc+2*p)}, {P2(acc+2*p)}')
        for p in range(8): w.e(f'v_pk_fma_f32 {P2(cs+2*p)}, {P2(cs+2*p)}, {P2(K+2)}, {P2(K+2)} op_sel:[0,1,0] op_sel_hi:[1,1,0]')
        for p in range(8): w.e(f'v_pk_mul_f32 {P2(cs+2*p)}, {P2(cs+2*p)}, {P2(acc+2*p)}')
        for r in range(16): w.e(f'v_exp_f32 {v(cs+r)}, {v(cs+r)}')
        for p in range(8): w.e(f'v_pk_fma_f32 {P2(cs+2*p)}, {P2(cs+2*p)}, {P2(K)}, {P2(K)} op_sel:[0,1,1] op_sel_hi:[1,1,1]')
        for r in range(16): w.e(f'v_rcp_f32 {v(cs+r)}, {v(cs+r)}')
        for p in range(8): w.e(f'v_pk_mul_f32 {P2(acc+2*p)}, {P2(acc+2*p)}, {P2(cs+2*p)}')
        for p in range(8): w.e(f'v_cvt_pk_bf16_f32 {v(pk+p)}, {v(acc+2*p)}, {v(acc+2*p+1)}')
    def gelu_plain(F, acc, cs, K, pk, half):
        for g in range(2):
            R = range(8 * g, 8 * g + 8); tt = lambda r: v(cs + r)
            for r in R: F.add(f'v_fmac_f32 {v(acc+r)}, {tt(r)}, {v(K)}')
            for r in R: F.add(f'v_mul_f32 {tt(r)}, {v(acc+r)}, {v(acc+r)}')
            for r in R: F.add(f'v_fma_f32 {tt(r)}, {tt(r)}, {v(K+3)}, {v(K+2)}')
            for r in R: F.add(f'v_mul_f32 {tt(r)}, {tt(r)}, {v(acc+r)}')
            for r in R: F.add(f'v_exp_f32 {tt(r)}, {tt(r)}', 8)
            for r in R: F.add(f'v_fma_f32 {tt(r)}, {tt(r)}, {v(K+1)}, {v(K+1)}')
            for r in R: F.add(f'v_rcp_f32 {tt(r)}, {tt(r)}', 8)
            for r in R: F.add(f'v_mul_f32 {v(acc+r)}, {v(acc+r)}, {tt(r)}')
            for p in range(4 * g, 4 * g + 4): F.add(f'v_cvt_pk_bf16_f32 {v(pk+p)}, {v(acc+2*p)}, {v(acc+2*p+1)}')
            half(g)

    L = 3
    lcs, ljoin = lab('hc'), lab('hj')
    w.e('s_add_u32 s6, s3, 1'); w.e('s_bitcmp1_b32 s6, 1'); w.e(f's_cbranch_scc1 {lcs}')
    sv = list(w.vm), list(w.lg), list(w.hist)
    for var in range(2):
        if var: w.label(lcs); w.vm, w.lg, w.hist = sv
        steps = []
        for n in range(32):
            c, ks = n >> 2, n & 3
            def rd(n=n, c=c, ks=ks):
                if n == 16:
                    for k in range(4): w.e(f'v_add_u32 {v(XA+k)}, 0x10000, {v(XA+k)}')
                w.e(f'ds_read_b128 {v(X(n),4)}, {v(XA+ks)} offset:{SL(c & 3)}')
                tr(WR + 4 * (n % L), WA, SL(c) + 8192 + ks * 2048, 512)
            def mm(n=n):
                z = lambda r, k: '0' if n == 0 else v(r, k)
                wr = v(WR + 4 * (n % L), 4)
                if OPT['x1'] == 2: return
                if OPT['x1'] == 1: pass
                elif var == 0:
                    for hf in range(2):
                        xx = v(X(n) + 2 * hf, 2)
                        w.e(f'{M4} {v(SQ+8*hf,4)}, {xx}, {xx}, {z(SQ+8*hf,4)}'); w.e(f'{M4} {v(SQ+4+8*hf,4)}, {v(ONE,2)}, {xx}, {z(SQ+4+8*hf,4)}')
                else: w.e(f'{MF} {v(CS,16)}, {wr}, {v(ONE,4)}, {z(CS,16)}')
                w.e(f'{MF} {v(ACC0,16)}, {wr}, {v(X(n),4)}, {z(ACC0,16)}')
            sp = dict(rd=rd, mm=mm)
            if ks == 0: sp['chk'] = ('D', f'f{c}')
            if n == 15: sp['mark'] = ['c3']
            sp['post'] = (lambda c=c, ks=ks, n=n: (st(f'h{c}') if ks == 0 else None, st(f'sh{n:02d}')))
            steps.append(sp)
        run_steps(steps, L)
        if var == 0:
            for i in range(5): w.e(f'v_add_f32 {v(SQ+i)}, {v(SQ+i)}, {v(SQ+8+i)}')
            w.e(f'v_cndmask_b32 v12, {v(SQ)}, {v(SQ+1)}, {s(sM1,2)}'); w.e(f'v_cndmask_b32 v13, {v(SQ+2)}, {v(SQ+3)}, {s(sM1,2)}'); w.e(f'v_cndmask_b32 v13, v12, v13, {s(sM2,2)}')
            ln_consts(w.e, SQ + 4, 13, 8)
            w.e(f'ds_write_b128 {v(vHk)}, v[8:11]'); mark('hx'); w.waitcnt(vm=0); w.e(f's_branch {ljoin}')
        else:
            w.e('s_mov_b32 exec_lo, 1'); w.e('s_mov_b32 exec_hi, 1')
            for j in range(4): w.e(f'ds_write_b128 {v(vHc)}, {v(CS+4*j,4)} offset:{32*j}')
            w.e('s_mov_b64 exec, -1'); mark('hx'); w.waitcnt(vm=0)
    w.label(ljoin)
    nev = [2]
    def mark2(name):
        nev[0] += 1; evs[name] = nev[0]
        w.e(f'ds_add_u32 {v(vMy)}, {v(vOne)}'); w.lines[-1] += f'    ; mark {name}'
    mark = mark2
    st('hend')

    L = 5
    fill = Filler()
    ACC2 = 80 - 16 + 16
    QA = (ACC1, 80, ACC1)
    fchk(fill, ('C', 'hx'))
    fill.add(f'ds_read_b128 v[8:11], {v(vHk)}', 6)
    for j in range(4): fill.add(f'ds_read_b128 {v(CS+4*j,4)}, {v(vHc)} offset:{32*j}', 6)
    fill.add(f's_lshl_b32 {s(sA)}, {s(sT2)}, 10'); fill.add(f's_add_u32 {s(sA)}, {s(sA)}, {WS_HS}', 30)
    def hhalf(u):
        for p in range(4 * u, 4 * u + 4): fill.add(f'v_cndmask_b32 {v(PK+p)}, 0, {v(PK+p)}, {s(sHV,2)}')
        fill.add(f'buffer_store_dwordx4 {v(PK+4*u,4)}, {v(vHo)}, {s(R_WS,4)}, {s(sA)} offen offset:{1024*u} sc1', 10, 'hst')
    gelu_plain(fill, ACC0, CS, 8, PK, hhalf)
    fill.call(lambda: st('hst'))
    def qkv_epi(i, F):
        acc = QA[i]
        if i == 0:
            for r in range(16): F.add(f'v_mul_f32 {v(acc+r)}, {fl(0.25*LOG2E)}, {v(acc+r)}')
        for p in range(8): F.add(f'v_cvt_pk_bf16_f32 {v(PK+p)}, {v(acc+2*p)}, {v(acc+2*p+1)}')
        base = (WS_Q, WS_K, WS_V)[i]
        F.add(f's_add_u32 {s(sA)}, {s(sO1)}, {base}')
        if i < 2:
            F.add(f's_add_u32 {s(sB)}, {s(sO1)}, {base + 65536}')
            F.add(f'buffer_store_dwordx4 {v(PK,4)}, {v(vL16)}, {s(R_WS,4)}, {s(sA)} offen sc1', 10, 'qkvst')
            F.add(f'buffer_store_dwordx4 {v(PK+4,4)}, {v(vL16)}, {s(R_WS,4)}, {s(sB)} offen sc1', 10, 'qkvst')
        else:
            for u in range(2): F.add(f'buffer_store_dwordx4 {v(PK+4*u,4)}, {v(vVo)}, {s(R_WS,4)}, {s(sA)} offen offset:{512*u} sc1', 10, 'qkvst')
    steps = []
    for n in range(96):
        i, f = n // 32, n % 32
        t = 8 + n // 8
        def rd(n=n, f=f, t=t):
            tr(WR + 4 * (n % L), WA, SL(t % 9) + (f % 8) * 2048, 512)
            if n == 95: assert not fill.q; w.wait_vm_tag('qkvst')
        def mm(n=n, i=i, f=f):
            acc = QA[i]; wr = v(WR + 4 * (n % L), 4); xf = v(X(f), 4)
            a, b = (wr, xf) if i < 2 else (xf, wr)
            if OPT['x1'] == 2: return
            w.e(f'{MF} {v(acc,16)}, {a}, {b}, {"0" if f == 0 else v(acc,16)}')
        sp = dict(rd=rd, mm=mm)
        if f % 8 == 0: sp['chk'] = ('D', f'f{t}')
        if n == 31: sp['mark'] = ['c11']
        if n == 95: sp['mark'] = ['vdone']
        def post(n=n, i=i, f=f):
            if f == 3 and i > 0: qkv_epi(i - 1, fill)
            if n in (80, 81, 82, 83):
                j = n - 80
                w.e(f'ds_read_b64 {v(XR+2*j,2)}, {v(vXr)}')
                if j < 3: w.e(f'v_xor_b32 {v(vXr)}, {16*(j ^ (j+1))}, {v(vXr)}')
            if n == 63: fill.flush(w); w.wait_vm_tag('hst'); mark('hdr')
            if f == 31: st(f'q{i}')
            st(f'sq{n:02d}')
        sp['post'] = post
        steps.append(sp)
    run_steps(steps, L, fill, OPT['hb'])
    def splitk_bases():
        w.e(f's_lshl_b32 {s(sA)}, {s(sC2)}, 6'); w.e(f'v_xor_b32 {v(WA[0])}, {s(sA)}, {v(vCom)}'); w.e(f'v_lshl_add_u32 {v(WA[0])}, {v(vH)}, 9, {v(WA[0])}')
        w.e(f's_lshl_b32 {s(sA)}, {s(sC2)}, 13'); w.e(f'v_add_u32 {v(WA[0])}, {s(sA)}, {v(WA[0])}'); w.e(f'v_xor_b32 {v(WB[0])}, 64, {v(WA[0])}')
        windows(WA); windows(WB)
    fill.flush(w)
    chk_rd(('Y', 'h'))
    splitk_bases()
    qkv_epi(2, fill); fill.flush(w)

    def act_base(dst, wsoff, rbmul, khshift):
        w.e(f's_mul_i32 {s(dst)}, {s(sRB)}, {rbmul}'); w.e(f's_add_u32 {s(dst)}, {s(dst)}, {wsoff}')
        w.e(f's_lshl_b32 {s(sA)}, {s(khshift[0])}, {khshift[1]}'); w.e(f's_add_u32 {s(dst)}, {s(dst)}, {s(sA)}')
    def act_loads(F, base, slot_off, ring, tag=None):
        F.add(f's_add_u32 {s(sB)}, {s(base)}, {slot_off}', 3)
        for i in range(4): F.add(f'buffer_load_dwordx4 {v(X(ring+i),4)}, {v(vL16)}, {s(R_WS,4)}, {s(sB)} offen offset:{1024*i} sc1', 10, tag)
    def splitk_steps(slots, chks, marks, ring0, a0, a1, n0=0):
        out = []
        for n in range(8 * len(slots)):
            sl, i, own = n >> 3, (n >> 1) & 3, n & 1
            g = n0 + n
            def rd(sl=sl, i=i, g=g, own=own): tr(WR + 4 * (g % 5), WA if own else WB, SL(slots[sl]) + i * 2048, 1024)
            def mm(n=n, g=g, own=own):
                a = a0 if own else a1
                w.e(f'{MF} {v(a,16)}, {v(WR+4*(g%5),4)}, {v(X((ring0 + (n >> 1)) % 32), 4)}, {"0" if n < 2 else v(a,16)}')
            sp = dict(rd=rd, mm=mm)
            if n & 7 == 0 and chks[sl]: sp['chk'] = chks[sl] if isinstance(chks[sl], tuple) else ('D', chks[sl])
            if n & 7 == 7 and marks[sl]: sp['mark'] = [marks[sl]]
            out.append(sp)
        return out
    act_base(sO2, WS_HS, 32768, (sC2, 12))
    chk_cmp(('Y', 'h')); chk_br(('Y', 'h'))
    st('p2go')
    for sl in range(2): act_loads(fill, sO2, sl * 8192, 4 * sl)
    fill.flush(w)
    for sl in range(2, 4): act_loads(fill, sO2, sl * 8192, 4 * sl)
    fill.call(lambda: mark('hl'))
    PK = 120
    steps = splitk_steps(S_W2, ['f20', 'f21', 'f23', ('C', 'vdone')], [None] * 4, 0, ACC0, ACC1)
    steps[0]['post'] = lambda: (w.wait_vm_tag('qkvst'), mark('qdr'))
    run_steps(steps, 5, fill, 10)
    fill.flush(w)
    st('p2mm')
    def exchange(slot, src, dst, name, between=None):
        w.e(f's_lshl_b32 {s(sA)}, s3, 12'); w.e(f's_add_u32 {s(sA)}, {s(sA)}, {SL(slot)}'); w.e(f'v_add_u32 v12, {s(sA)}, {v(vL16)}'); w.e('v_xor_b32 v13, 0x2000, v12')
        for q in range(4): w.e(f'ds_write_b128 v12, {v(src+4*q,4)} offset:{1024*q}')
        mark(name)
        if between: between()
        chk(('C', name))
        for q in range(4): w.e(f'ds_read_b128 {v(dst+4*q,4)}, v13 offset:{1024*q}')
    def add_x():
        for p in range(8):
            w.e(f'v_lshlrev_b32 {v(80+2*p)}, 16, {v(XR+p)}'); w.e(f'v_and_b32 {v(81+2*p)}, 0xffff0000, {v(XR+p)}')
        for p in range(8): w.e(f'v_pk_add_f32 {v(ACC0+2*p,2)}, {v(ACC0+2*p,2)}, {v(80+2*p,2)}')
        act_base(sO2, WS_X1, 32768, (sT2, 10))
    exchange(S_XCH, ACC1, CS, 'x2w', add_x)
    for u in range(2):
        for p in range(4 * u, 4 * u + 4): w.e(f'v_pk_add_f32 {v(ACC0+2*p,2)}, {v(ACC0+2*p,2)}, {v(CS+2*p,2)}')
        for p in range(4 * u, 4 * u + 4): w.e(f'v_cvt_pk_bf16_f32 {v(XR+p)}, {v(ACC0+2*p)}, {v(ACC0+2*p+1)}')
        w.e(f'buffer_store_dwordx4 {v(XR+4*u,4)}, {v(vL16)}, {s(R_WS,4)}, {s(sO2)} offen offset:{1024*u} sc1', 'x1st')
    w.e(f'v_pk_mul_f32 v[10:11], {v(ACC0,2)}, {v(ACC0,2)}'); w.e(f'v_pk_add_f32 v[8:9], {v(ACC0,2)}, {v(ACC0+2,2)}')
    for p in range(1, 8):
        w.e(f'v_pk_fma_f32 v[10:11], {v(ACC0+2*p,2)}, {v(ACC0+2*p,2)}, v[10:11]')
        if p > 1: w.e(f'v_pk_add_f32 v[8:9], v[8:9], {v(ACC0+2*p,2)}')
    w.e('v_add_f32 v8, v8, v9'); w.e('v_add_f32 v10, v10, v11')
    w.e('v_and_b32 v9, 31, v0'); w.e('v_lshlrev_b32 v9, 3, v9'); w.e(f'v_lshl_add_u32 v9, {v(vH)}, 2, v9')
    w.e('v_permlane32_swap_b32 v8, v10'); w.e('v_add_f32 v8, v8, v10')
    act_base(sO2, WS_STATS, 4096, (sT2, 7))
    w.e(f'buffer_store_dword v8, v9, {s(R_WS,4)}, {s(sO2)} offen sc1', 'x1st')
    st('p2end')

    O, NM, SA, SB, KF, VF, SC, M, KP, PD, PO, MD = 32, 48, 64, 80, 96, 104, 224, 240, 180, 200, 208, 216
    QF = [8, 4]; vKa, vVa, mx, tm = 2, 3, 12, 13
    w.e(f's_lshl_b32 {s(sA)}, s3, 10'); w.e(f's_add_u32 {s(sB)}, {s(sA)}, {SL(S_K)}'); w.e(f'v_add_u32 {v(vKa)}, {s(sB)}, {v(vL16)}')
    w.e('v_and_b32 v12, 15, v0'); w.e(f'v_lshl_add_u32 v12, v12, 4, {s(sA)}')
    w.e(f'v_lshl_add_u32 {v(vVa)}, {v(vH)}, 8, v12'); w.e(f'v_add_u32 {v(vVa)}, {SL(S_V)}, {v(vVa)}'); w.e(f'v_add_u32 v12, {SL(S_ONE)}, v12')
    w.e('s_mov_b32 vcc_lo, 0xffff0000'); w.e('s_mov_b32 vcc_hi, 0xffff0000'); w.e(f'v_cndmask_b32 {v(vVa)}, {v(vVa)}, v12, vcc')
    w.e('v_mov_b32 v4, 0xffff'); w.e('v_mov_b32 v5, 0xffff0000')
    for p in range(8):
        w.e(f'v_cndmask_b32 {v(MD+p)}, 0, v4, {s(MK+4*p,2)}'); w.e(f'v_cndmask_b32 v12, 0, v5, {s(MK+4*p+2,2)}'); w.e(f'v_or_b32 {v(MD+p)}, {v(MD+p)}, v12')
    w.e(f's_lshl_b32 {s(sO1)}, {s(sQB)}, 3'); w.e(f's_add_u32 {s(sO1)}, {s(sO1)}, s3'); w.e(f's_lshl_b32 {s(sO1)}, {s(sO1)}, 5'); w.e(f's_add_u32 {s(sO1)}, {s(sO1)}, {s(sHD)}')
    w.e(f's_lshl_b32 {s(sO1)}, {s(sO1)}, 10'); w.e(f's_add_u32 {s(sO1)}, {s(sO1)}, {WS_O}')
    w.e(f's_lshl_b32 {s(sR4)}, {s(sRB128)}, 2'); w.e(f's_add_u32 {s(sR4)}, {s(sR4)}, s3')
    w.e(f's_lshl_b32 {s(sO2)}, {s(sR4)}, 15'); w.e(f's_add_u32 {s(sO2)}, {s(sO2)}, {WS_X1}')
    chk(('M', 'one')); chk(('Y', 'kq'))
    def finish_o(r, E):
        E(f'v_rcp_f32 {v(tm)}, {v(O+8)}')
        for i in range(8): E(f'v_mul_f32 {v(O+i)}, {v(O+i)}, {v(tm)}')
        for p in range(4): E(f'v_cvt_pk_bf16_f32 {v(O+8+p)}, {v(O+2*p)}, {v(O+2*p+1)}')
        if r: E(f's_add_u32 {s(sO1)}, {s(sO1)}, {4*32768}')
    ost = f'buffer_store_dwordx4 {v(O+8,4)}, {v(vL16)}, {s(R_WS,4)}, {s(sO1)} offen sc1'
    xl = Filler()
    for g in range(8): act_loads(xl, sO2, 4096 * g, 4 * g)
    for r in range(2):
        q = v(QF[r], 4)
        kread = lambda dst, j: w.e(f'ds_read_b128 {v(dst,4)}, {v(vKa)} offset:{(4*r+j)*1024}')
        vread = lambda e, j, u: w.e(f'ds_read_b128 {v(VF+4*e,4)}, {v(vVa)} offset:{(4*r+j)*1024+512*u}')
        st(f'a{r}_p1')
        if r == 0:
            w.e(f'ds_read_b128 {v(QF[0],4)}, {v(vKa)} offset:{L_Q-SL(S_K)}')
            for j in (8, 0, 1, 2, 3, 4, 5, 6, 7): kread(KP + 4 * j, j)
            w.e(f'ds_read_b128 {v(QF[1],4)}, {v(vKa)} offset:{L_Q-SL(S_K)+4096}')
        S1 = lambda dst, j: w.e(f'{MF} {v(dst,16)}, {v(KP+4*j,4)}, {q}, 0')
        def mxb(b, first=False):
            if first: w.e(f'v_max_f32 {v(mx)}, {v(b)}, {v(b+1)}')
            for p in range(1 if first else 0, 8): w.e(f'v_max3_f32 {v(mx)}, {v(mx)}, {v(b+2*p)}, {v(b+2*p+1)}')
        c = ('Y', 'v') if r == 0 else ('Y', 'x1')
        fo = Filler()
        if r == 1: finish_o(0, fo.add); fo.add(ost, 4, 'ost')
        S1(M, 8); S1(SA, 0); S1(SB, 1); fo.pull(w, 24); S1(SC, 2); fo.flush(w)
        for i in range(16): w.e(f'v_cndmask_b32 {v(M+i)}, {v(SA+i)}, {v(M+i)}, {s(MK+2*i,2)}')
        if r == 0: w.wait_vm_tag('x1st'); mark('x1dr')
        S1(SA, 3); mxb(M, True); mxb(SB); S1(SB, 4); mxb(SC); S1(SC, 5); mxb(SA); S1(SA, 6); chk_rd(c); mxb(SB); S1(SB, 7)
        kread(KF + 4, 1); kread(KF, 2)
        mxb(SC); chk_cmp(c); mxb(SA); chk_br(c)
        vread(0, 8, 0); vread(2, 0, 0); vread(1, 8, 1); vread(3, 0, 1)
        mxb(SB)
        w.e(f'v_mov_b32 {v(tm)}, {v(mx)}'); w.e(f'v_permlane32_swap_b32 {v(mx)}, {v(tm)}'); w.e(f'v_max_f32 {v(mx)}, {v(mx)}, {v(tm)}')
        for p in range(8): w.e(f'v_pk_mul_f32 {v(NM+2*p,2)}, {v(mx,2)}, -1.0 op_sel_hi:[0,0]')
        for p in range(8): w.e(f'v_pk_add_f32 {v(M+2*p,2)}, {v(M+2*p,2)}, {v(NM,2)}')
        SBUF = lambda j: SA if j & 1 else SB
        S2 = lambda j: w.e(f'{MF} {v(SBUF(j),16)}, {v(KF+4*(j&1),4)}, {q}, {v(NM,16)}')
        PV = lambda e, p, first=False: w.e(f'{MF} {v(O,16)}, {v(VF+4*e,4)}, {v(p,4)}, {"0" if first else v(O,16)}')
        ex = lambda b, a, z: [w.e(f'v_exp_f32 {v(b+i)}, {v(b+i)}') for i in range(a, z)]
        cv = lambda b, a, z: [w.e(f'v_cvt_pk_bf16_f32 {v(PK+p)}, {v(b+2*p)}, {v(b+2*p+1)}') for p in range(a, z)]
        if r == 1: ld = lambda: xl.pull(w, 10)
        else:
            kq = [None] * 12 + [8, 0, 1, 2, 3, 4, 5, 6, 7] + [None] * 9
            def ld():
                j = kq.pop(0)
                if j is not None: w.e(f'ds_read_b128 {v(KP+4*j,4)}, {v(vKa)} offset:{(4+j)*1024}')
        st(f'a{r}_p2')
        S2(1); kread(KF + 4, 3)
        ld(); ex(M, 0, 9); cv(M, 0, 4); ld()
        for p in range(4): w.e(f'v_and_b32 {v(PD+p)}, {v(PK+p)}, {v(MD+p)}')
        for p in range(4): w.e(f'v_bfi_b32 {v(PO+p)}, {v(MD+p)}, 0, {v(PK+p)}')
        PV(0, PD, True); ex(M, 9, 13); PV(2, PO); vread(2, 1, 0); ex(M, 13, 16); ld(); cv(M, 4, 8)
        for p in range(4, 8): w.e(f'v_bfi_b32 {v(PO+p)}, {v(MD+p)}, 0, {v(PK+p)}')
        for p in range(4, 8): w.e(f'v_and_b32 {v(PD+p)}, {v(PK+p)}, {v(MD+p)}')
        PV(3, PO + 4); vread(3, 1, 1)
        pend = lambda: (PV(1, PD + 4), vread(0, 2, 0), vread(1, 2, 1))
        for j in range(1, 8):
            b = SBUF(j); e = 2 * (j & 1)
            ex(b, 0, 3); pend(); ex(b, 3, 6)
            if j < 7:
                S2(j + 1)
                if j + 3 < 8: kread(KF + 4 * ((j + 1) & 1), j + 3)
            ld(); ex(b, 6, 9); cv(b, 0, 4); ex(b, 9, 11); PV(e, PK); ld(); ex(b, 11, 16); ld(); cv(b, 4, 8)
            def pend(j=j, e=e):
                PV(e + 1, PK + 4)
                if j + 2 < 8: vread(e, j + 2, 0); vread(e + 1, j + 2, 1)
        pend()
        st(f'a{r}_end')

    CS4, AC = 48, [64, 80]
    vCs = 30
    lsp, lsj = lab('sp'), lab('sj')
    act_o = lambda: act_base(sO2, WS_O, 32768, (sC2, 12))
    w.e(f's_cmp_eq_u32 {s(sV4)}, 0'); w.e(f's_cbranch_scc1 {lsp}')
    ev0 = nev[0]
    w.e(f'v_lshl_add_u32 {v(WA[0])}, {v(vH)}, 9, {v(vCom)}'); w.e(f'v_xor_b32 {v(WB[0])}, 64, {v(WA[0])}'); windows(WA); windows(WB)
    L = 5
    fill = Filler()
    finish_o(1, fill.add); fill.add(ost, 10, 'ost')
    fill.add(f's_lshl_b32 {s(sA)}, {s(sR4)}, 12', 3); fill.add(f's_add_u32 {s(sA)}, {s(sA)}, {WS_STATS}', 3)
    fill.add('v_and_b32 v9, 31, v0'); fill.add('v_lshlrev_b32 v9, 3, v9'); fill.add(f'v_lshl_add_u32 v9, {v(vH)}, 11, v9')
    fill.q += xl.q; xl.q = []
    for i in range(8): fill.add(f'buffer_load_dwordx2 {v(CS4+2*i,2)}, v9, {s(R_WS,4)}, {s(sA)} offen offset:{256*i} sc1', 10)
    fill.call(lambda: mark('att'), 10)
    for t_ in (f's_mul_i32 {s(sO1)}, {s(sR4)}, {112*1024}', f's_lshl_b32 {s(sA)}, {s(sJ)}, 13', f's_add_u32 {s(sO1)}, {s(sO1)}, {s(sA)}', f's_add_u32 {s(sO1)}, {s(sO1)}, {WS_H3}'): fill.add(t_, 3)
    fill.call(act_o, 12)
    fill.add(f'v_lshlrev_b32 {v(vCs)}, 4, {v(vH)}'); fill.add(f'v_add_u32 {v(vCs)}, {L_CS3}, {v(vCs)}')
    fchk(fill, ('M', 'cs'))
    for i in range(1, 8):
        fill.add(f'v_add_f32 {v(CS4)}, {v(CS4)}, {v(CS4+2*i)}'); fill.add(f'v_add_f32 {v(CS4+1)}, {v(CS4+1)}, {v(CS4+2*i+1)}')
    ln_consts(fill.add, CS4, CS4 + 1, 8)
    def cs_reads(F, t):
        for j in range(4): F.add(f'ds_read_b128 {v(CS4+4*j,4)}, {v(vCs)} offset:{128*t+32*j}', 6)
    def h3_store(F, t, u):
        if u == 0: F.add(f's_add_u32 {s(sA)}, {s(sO1)}, {2048*t}', 3)
        F.add(f'buffer_store_dwordx4 {v(PK+4*u,4)}, {v(vL16)}, {s(R_WS,4)}, {s(sA)} offen offset:{1024*u} sc1', 10, f'h3st{t >> 1}')
    ol = Filler()
    for sl in range(4): act_loads(ol, sO2, sl * 8192, 4 * sl)
    steps = []
    for n in range(128):
        t, f = n >> 5, n & 31
        def rd(n=n, t=t, f=f): tr(WR + 4 * (n % L), (WA, WB)[t & 1], SL((S_W3A, S_W3B)[t >> 1][f >> 3]) + (f & 7) * 2048, 1024)
        def mm(n=n, t=t, f=f):
            w.e(f'{MF} {v(AC[t&1],16)}, {v(WR+4*(n%L),4)}, {v(X(f),4)}, {"0" if f == 0 else v(AC[t&1],16)}')
        sp = dict(rd=rd, mm=mm, budget=16 if t == 0 else 22)
        if n == 0: sp['chk'] = ('D', 'w303')
        if n == 64: sp['chk'] = ('D', 'w311')
        if n == 80: sp['chk'] = ('D', 'w313')
        if n == 104: sp['chk'] = ('Y', 'o')
        if n == 63: sp['mark'] = ['p4a']
        if n == 127: sp['mark'] = ['p4b']
        def post(n=n, t=t, f=f):
            if f % 16 == 15: st(f'p4_{t}_{f}')
            if f == 31:
                fill.flush(w)
                cs_reads(fill, t)
                if t < 3: fill.call(lambda: None, 40); gelu_plain(fill, AC[t & 1], CS4, 8, PK, lambda u: h3_store(fill, t, u))
            if n == OPT['odr']: w.wait_vm_tag('ost'); mark('odr')
            if n == OPT['adr']: w.wait_vm_tag('h3st0'); mark('adr')
            if t == 3 and f >= 4: ol.pull(w, 5 if f & 1 else 0) if f < 24 else ol.pull(w, 10)
        sp['post'] = post
        steps.append(sp)
    run_steps(steps, L, fill)
    fill.flush(w); ol.flush(w)
    splitk_bases()
    gelu_packed(AC[1], CS4, 8, PK)
    h3_store(fill, 3, 0); h3_store(fill, 3, 1); fill.flush(w)
    sp_ = Wave('spare'); sp_.label(lsp); wm = w
    sp_.e('s_nop 15'); sp_._push(Ins('s_waitcnt vmcnt(0) lgkmcnt(0)'))
    w = sp_
    finish_o(1, w.e); w.e(ost, 'ost'); act_o(); splitk_bases(); w.waitcnt(vm=0)
    w.e(f'v_mov_b32 {v(vF)}, {nev[0] - ev0}'); w.e(f'ds_add_u32 {v(vMy)}, {v(vF)}')
    lwait(w, 'Y', 'o')
    for sl in range(4): act_loads(fill, sO2, sl * 8192, 4 * sl)
    fill.flush(w); w.waitcnt(vm=0)
    w.e(f's_branch {lsj}')
    w = wm; w.spare = sp_
    w.label(lsj)
    st('p4end')

    A0, A1, B0, B1 = 32, 48, 64, 80
    w.e('v_and_b32 v9, 31, v0'); w.e('v_lshlrev_b32 v10, 2, v9'); w.e(f's_lshl_b32 {s(sA)}, {s(sRB)}, 7'); w.e(f's_add_u32 {s(sA)}, {s(sA)}, {WS_G}')
    w.e(f'buffer_load_dword {v(vG)}, v10, {s(R_WS,4)}, {s(sA)} offen sc1')
    act_base(sO2, WS_H3, 112 * 1024, (sC2, 13))
    h3l = lambda i: act_loads(fill, sO2, (i % 7) * 16384 + (i // 7) * 4096, (16 + 4 * i) % 32)
    s5 = splitk_steps(S_WO, ['wo3', None, None, None], [None, 'o1', None, 'o3'], 0, A0, A1)
    s6 = splitk_steps(S_W4, [f'w4_{i}' for i in range(12)] + ['w4_12', 'w4_13'], [f'g{i}' if i in (1, 3, 5) else None for i in range(14)], 16, B0, B1, n0=32)
    fchk(fill, ('Y', 'a'), 1)
    for k in range(LA6): h3l(k)
    s5[24]['post'] = lambda: (w.wait_vm_tag('h3st1'), mark('bdr'))
    s5[31]['post'] = lambda: st('p5end')
    for i in range(14 - LA6): s6[8 * i]['post'] = (lambda i=i: ((fill.flush(w), chk(('Y', 'b'))) if i + LA6 == 7 else None, h3l(i + LA6), st(f'p6_{i}')))
    def mixprep():
        fill.add(f'v_sub_f32 {v(vG+1)}, 1.0, {v(vG)}')
        for r in range(32): fill.add(f'v_mul_f32 {v(A0+r)}, {v(A0+r)}, {v(vG)}')
        for p in range(8):
            fill.add(f'v_lshlrev_b32 v10, 16, {v(XR+p)}'); fill.add(f'v_and_b32 v11, 0xffff0000, {v(XR+p)}')
            fill.add(f'v_fmac_f32 {v(A0+2*p)}, v10, {v(vG+1)}'); fill.add(f'v_fmac_f32 {v(A0+2*p+1)}, v11, {v(vG+1)}')
        fill.add(f'v_lshlrev_b32 v10, 10, v9'); fill.add(f'v_lshl_add_u32 v10, {v(vH)}, 4, v10')
        fill.add(f's_lshl_b32 {s(sO1)}, {s(sRB)}, 15'); fill.add(f's_lshl_b32 {s(sA)}, {s(sT2)}, 5'); fill.add(f's_add_u32 {s(sO1)}, {s(sO1)}, {s(sA)}')
    s6[81]['post'] = mixprep
    run_steps(s5 + s6, 5, fill, 10)
    fill.flush(w)
    st('p6mm')
    g1 = v(vG, 2)
    for p in range(8): w.e(f'v_pk_fma_f32 {v(A1+2*p,2)}, {v(B1+2*p,2)}, {g1}, {v(A1+2*p,2)} op_sel:[0,1,0] op_sel_hi:[1,1,1]')
    def own():
        for p in range(8): w.e(f'v_pk_fma_f32 {v(A0+2*p,2)}, {v(B0+2*p,2)}, {g1}, {v(A0+2*p,2)} op_sel:[0,1,0] op_sel_hi:[1,1,1]')
    exchange(S_XF, A1, B1, 'xfw', own)
    for u in range(2):
        for p in range(4 * u, 4 * u + 4): w.e(f'v_pk_add_f32 {v(A0+2*p,2)}, {v(A0+2*p,2)}, {v(B1+2*p,2)}')
        for p in range(4 * u, 4 * u + 4): w.e(f'v_cvt_pk_bf16_f32 {v(PK+p)}, {v(A0+2*p)}, {v(A0+2*p+1)}')
        w.e(f'v_permlane32_swap_b32 {v(PK+4*u)}, {v(PK+4*u+2)}'); w.e(f'v_permlane32_swap_b32 {v(PK+4*u+1)}, {v(PK+4*u+3)}')
        w.e(f'buffer_store_dwordx4 {v(PK+4*u,4)}, v10, {s(R_OUT,4)}, {s(sO1)} offen offset:{32*u}')
    if DIAG:
        w.waitcnt(vm=0); st.n = 14; st('end', True); st('rt1', True); st.dump()
    w.e('s_endpgm')
    return w

def build():
    uid[0] = 0
    pro = prologue()
    c = role_comp(pro)
    EV['C'] = dict(c.evs)
    return pro, role_dma(pro), role_misc(pro), role_sync(pro), c

def main():
    out = sys.argv[1]
    build()
    pro, d, m, y, c = build()
    assert max(EV['C'].values()) <= 62
    for r in (d, y, m, c): print(r.name, 'instr', r.count, 'nop states', r.nops, file=sys.stderr)
    hdr = open('gated_mix__sliding_block__mixer_s_mlp__prompt.s.ref').read().split('; Override launch')[0]
    txt = hdr + f'''; One persistent launch: 256 workgroups (one per CU), 4 compute waves + 2 LDS-DMA waves + 1 mailbox wave + 1 helper wave.
; @launch grid=(256,1,1) block=(512,1,1) lds=163840
.amdgcn_target "amdgcn-amd-amdhsa--gfx950"
.text
.globl {NAME}
.p2align 8
.type {NAME},@function
{NAME}:
''' + '\n'.join(x.text() for x in (pro, d, m, y, c, c.stubs, c.spare, d.spare)) + f'''
Lend:
    s_endpgm
.p2align 8
Ltab:
''' + ''.join(f'    .long {i}\n' for i in range(64)) + f'''.section .rodata,"a"
.p2align 6
.amdhsa_kernel {NAME}
  .amdhsa_next_free_vgpr 256
  .amdhsa_next_free_sgpr 102
  .amdhsa_accum_offset 256
  .amdhsa_group_segment_fixed_size 0
  .amdhsa_kernarg_size 96
  .amdhsa_user_sgpr_count 2
  .amdhsa_user_sgpr_kernarg_segment_ptr 1
  .amdhsa_system_sgpr_workgroup_id_x 1
.end_amdhsa_kernel
'''
    open(out, 'w').write(txt)
    if DIAG: open(out + '.stamps', 'w').write('\n'.join(' '.join(x.st.names) for x in (c, d, y, m)))
    print(EV['C'], file=sys.stderr)
main()
```
